```python
import torch

def _softmax(x, axis=-1):
    return torch.softmax(x, dim=axis)

def _gelu(x):
    return torch.nn.functional.gelu(x, approximate='tanh')

def _silu(x):
    return torch.nn.functional.silu(x)

def _sigmoid(x):
    return torch.sigmoid(x)

def _layernorm(x, axis=-1, eps=1e-05):
    m = x.mean(dim=axis, keepdim=True)
    v = x.var(dim=axis, keepdim=True, unbiased=False)
    return (x - m) / torch.sqrt(v + eps)

def _scatter_add(tgt, idx, src, axis=0):
    return tgt.clone().index_add_(axis, idx, src)

def _segment_sum(src, seg, n):
    out = torch.zeros((n,) + src.shape[1:], dtype=src.dtype)
    return out.index_add_(0, seg, src)

def _pad(x, pw):
    flat = tuple((v for pair in reversed(pw) for v in pair))
    return torch.nn.functional.pad(x, flat)
kernel_name = 'concat_heads__linear_kernel_hedgehog__memory_aug_recurrent_mem_tr__prompt'

def setup_inputs():

    _w = lambda a: (lambda t: t.to(torch.bfloat16) if t.is_floating_point() else t)(torch.as_tensor(a))

    def _A_setup():
        B, S, D, H = (1, 2048, 640, 32)
        Dh = D // H
        return {'x': _w((lambda *s: torch.randn(*s, dtype=torch.bfloat16) * 0.8)(B, S, D)), 'wqkv': _w((lambda *s: torch.randn(*s, dtype=torch.bfloat16) * 0.8)(D, 3 * D)), 'w_phi': _w((lambda *s: torch.randn(*s, dtype=torch.bfloat16) * 0.8)(H, Dh, Dh) * Dh ** (-0.5)), 'wo': _w((lambda *s: torch.randn(*s, dtype=torch.bfloat16) * 0.05)(D, D))}
    _A_in = _A_setup()

    def _B_setup():
        B, S, Dm = (1, 2048, 640)
        H, Dh = (32, 128)
        M, seg = (8, 32)
        seg = min(seg, S)
        S = S // seg * seg
        return {'x': _w((lambda *s: torch.randn(*s, dtype=torch.bfloat16) * 0.05)(B, S, Dm)), 'mem0': _w((lambda *s: torch.randn(*s, dtype=torch.bfloat16) * 1.6)(B, M, Dm)), 'Wq': _w((lambda *s: torch.randn(*s, dtype=torch.bfloat16) * 0.8)(Dm, H, Dh) * Dm ** (-0.5)), 'Wk': _w((lambda *s: torch.randn(*s, dtype=torch.bfloat16) * 0.8)(Dm, H, Dh) * Dm ** (-0.5)), 'Wv': _w((lambda *s: torch.randn(*s, dtype=torch.bfloat16) * 1.6)(Dm, H, Dh) * Dm ** (-0.5)), 'Wo': _w((lambda *s: torch.randn(*s, dtype=torch.bfloat16) * 1.6)(H, Dh, Dm) * (H * Dh) ** (-0.5)), 'seg_len': seg}
    _B_in = _B_setup()
    return {'A_x': _A_in['x'], 'A_wqkv': _A_in['wqkv'], 'A_w_phi': _A_in['w_phi'], 'A_wo': _A_in['wo'], 'B_x': _B_in['x'], 'B_mem0': _B_in['mem0'], 'B_Wq': _B_in['Wq'], 'B_Wk': _B_in['Wk'], 'B_Wv': _B_in['Wv'], 'B_Wo': _B_in['Wo'], 'B_seg_len': _B_in['seg_len']}

def reference(A_x, A_wqkv, A_w_phi, A_wo, B_x, B_mem0, B_Wq, B_Wk, B_Wv, B_Wo, B_seg_len):

    def _A_ref(x, wqkv, w_phi, wo):
        B, S, D = x.shape
        H = 32
        Dh = D // H
        qkv = (lambda x, *d: x.permute(*d))((x @ wqkv).reshape(B, S, 3, H, Dh), 2, 0, 3, 1, 4)
        q, k, v = (qkv[0], qkv[1], qkv[2])
        pq = torch.einsum('bhsd,hdf->bhsf', q, w_phi)
        pk = torch.einsum('bhsd,hdf->bhsf', k, w_phi)
        phi_q = torch.concatenate([_softmax(pq, axis=-1), _softmax(-pq, axis=-1)], axis=-1)
        phi_k = torch.concatenate([_softmax(pk, axis=-1), _softmax(-pk, axis=-1)], axis=-1)
        kv = torch.einsum('bhsf,bhsd->bhfd', phi_k, v)
        z = torch.einsum('bhsf->bhf', phi_k)
        num = torch.einsum('bhqf,bhfd->bhqd', phi_q, kv)
        den = torch.einsum('bhqf,bhf->bhq', phi_q, z)[..., None] + 1e-06
        o = num / den
        return (lambda x, *d: x.permute(*d))(o, 0, 2, 1, 3).reshape(B, S, D) @ wo

    def _B_ref(x, mem0, Wq, Wk, Wv, Wo, seg_len):
        B, S, Dm = x.shape
        H, Dh = (Wq.shape[1], Wq.shape[2])
        M = mem0.shape[1]
        scale = Dh ** (-0.5)
        n_seg = S // seg_len
        L = M + seg_len
        idx = torch.arange(L)
        mask = (idx[:, None] < M) | (idx[:, None] >= idx[None, :])
        mem = mem0
        outs = []
        for s in range(n_seg):
            xs = x[:, s * seg_len:(s + 1) * seg_len, :].clone()
            h = torch.concatenate([mem, xs], axis=1)
            q = torch.einsum('btd,dhe->bhte', h, Wq)
            k = torch.einsum('btd,dhe->bhte', h, Wk)
            v = torch.einsum('btd,dhe->bhte', h, Wv)
            scores = torch.einsum('bhqe,bhke->bhqk', q, k) * scale
            scores = torch.where(mask[None, None], scores, -1000000000.0)
            p = _softmax(scores, axis=-1)
            o = torch.einsum('bhqk,bhke->bhqe', p, v)
            o = torch.einsum('bhte,hed->btd', o, Wo)
            mem = o[:, :M, :].clone()
            outs.append(o[:, M:, :])
        return torch.concatenate(outs, axis=1)
    a = _A_ref(A_x, A_wqkv, A_w_phi, A_wo)
    b = _B_ref(B_x, B_mem0, B_Wq, B_Wk, B_Wv, B_Wo, B_seg_len)
    return torch.concatenate([a, b], axis=-1)
```

```python
from layout import *
from chain import sW, sGRP, sIDX, sT0, sT1, sT2, sT3, sSpin, WS, DBG, srd, spin_check
from workers import V, A, wait_dbg, wstamp, signal

sA, sHG, sTB, sP, sH, sX, sY, sK, sL2E, sBIG = ['s%d' % i for i in range(33, 43)]
LOG2E = 0x3fb8aa3b
M32 = 'v_mfma_f32_32x32x16_bf16'
M16 = 'v_mfma_f32_16x16x32_bf16'


def kstep_off(ks):
    return (20 * (ks // 10) + ks % 10) * 16


def gen_a0(a):
    a('s_lshl_b32 %s, %s, 2' % (sT0, sA))
    a('s_add_u32 %s, %s, %s' % (sT0, sT0, sW))
    a('s_lshr_b32 %s, %s, 6' % (sP, sT0))
    a('s_bfe_u32 %s, %s, 0x50001' % (sH, sT0))
    a('s_and_b32 %s, %s, 1' % (sK, sT0))
    srd(a, 16, 68, 25600)
    a('s_cmp_eq_u32 %s, 3' % sP)
    a('s_cselect_b64 s[12:13], s[70:71], s[66:67]')
    a('s_and_b32 s13, s13, 0xffff')
    a('s_cmp_eq_u32 %s, 3' % sP)
    a('s_mov_b32 %s, 819200' % sT1)
    a('s_cselect_b32 s14, %s, 2457600' % sT1)
    a('s_mov_b32 s15, 0x20000')
    a('s_cmp_eq_u32 %s, 3' % sP)
    a('s_movk_i32 %s, 1280' % sT1)
    a('s_cselect_b32 %s, %s, 3840' % (sX, sT1))
    a('s_mul_i32 %s, %s, 1280' % (sT1, sP))
    a('s_cselect_b32 %s, 0, %s' % (sT1, sT1))
    a('s_mul_i32 %s, %s, 40' % (sT2, sH))
    a('s_add_u32 %s, %s, %s' % (sY, sT1, sT2))
    a('v_and_b32 v4, 15, v0')
    a('v_lshrrev_b32 v5, 4, v0')
    a('v_mul_lo_u32 v6, v4, %s' % sX)
    a('v_lshl_add_u32 v6, v5, 4, v6')
    a('s_mul_i32 %s, %s, 800' % (sT1, sH))
    ident, done = a.label('a0id'), a.label('a0b')
    a('s_cmp_ge_u32 %s, 2' % sP)
    a('s_cbranch_scc1 %s' % ident)
    for tau in range(2):
        for j in range(8):
            a('v_lshl_add_u32 v7, v5, 3, %d' % j)
            a('v_add_u32 v8, %d, v4' % (16 * tau))
            a('v_max_u32 v9, v7, v8')
            a('v_mul_u32_u24 v7, 40, v7')
            a('v_lshl_add_u32 v7, v8, 1, v7')
            a('v_cmp_gt_u32 vcc, 20, v9')
            a('v_cndmask_b32 v7, %s, v7, vcc' % V(2))
            a('buffer_load_ushort %s, v7, s[16:19], %s offen' % (V(32 + 8 * tau + j), sT1))
    a('s_waitcnt vmcnt(0)')
    a('s_branch %s' % done)
    a(ident + ':')
    a('v_mov_b32 v9, 0x3f80')
    for tau in range(2):
        for j in range(8):
            a('v_lshl_add_u32 v7, v5, 3, %d' % j)
            a('v_add_u32 v8, %d, v4' % (16 * tau))
            a('v_cmp_eq_u32 vcc, v7, v8')
            a('v_cndmask_b32 %s, 0, v9, vcc' % V(32 + 8 * tau + j))
    a(done + ':')
    for p in range(8):
        a('v_lshl_or_b32 %s, %s, 16, %s' % (V(16 + p), V(33 + 2 * p), V(32 + 2 * p)))
    a('s_and_b32 %s, %s, 3' % (sT1, sH))
    a('s_mul_i32 %s, %s, 20' % (sT1, sT1))
    a('s_bfe_u32 %s, %s, 0x10002' % (sT2, sH))
    a('s_lshl_b32 %s, %s, 6' % (sT2, sT2))
    a('v_lshrrev_b32 v10, 1, v5')
    a('v_mul_u32_u24 v10, 5120, v10')
    a('v_and_b32 v11, 1, v5')
    a('v_lshl_add_u32 v10, v11, 3, v10')
    a('v_add_u32 v10, %s, v10' % sT2)
    for tau in range(2):
        a('v_add_u32 v8, %d, v4' % (16 * tau))
        a('v_add_u32 v7, %s, v8' % sT1)
        a('v_lshrrev_b32 v9, 4, v7')
        a('v_lshl_add_u32 v9, v9, 10, v10')
        a('v_bfe_u32 v11, v7, 2, 2')
        a('v_lshl_add_u32 v9, v11, 7, v9')
        a('v_and_b32 v11, 3, v7')
        a('v_lshl_add_u32 v9, v11, 4, v9')
        a('v_cmp_gt_u32 vcc, 20, v8')
        a('v_cndmask_b32 %s, %s, v9, vcc' % (V(12 + tau), V(2)))
    a('s_lshl_b32 %s, %s, 2' % (sT1, sP))
    a('s_lshr_b32 %s, %s, 3' % (sT2, sH))
    a('s_add_u32 %s, %s, %s' % (sT1, sT1, sT2))
    a('s_mul_i32 %s, %s, 204800' % (sT1, sT1))
    a('s_mul_i32 %s, %s, 102400' % (sT2, sK))
    a('s_add_u32 %s, %s, %s' % (sT1, sT1, sT2))
    a('s_add_u32 %s, %s, 0x%x' % (sT3, sT1, AW))
    a('s_mul_i32 %s, %s, 320' % (sT1, sK))
    a('s_mul_i32 %s, %s, %s' % (sT1, sT1, sX))
    a('s_add_u32 %s, %s, %s' % (sY, sY, sT1))
    a('s_lshl_b32 %s, %s, 4' % (sX, sX))
    for dt in range(20):
        a('buffer_load_dwordx4 %s, v6, s[12:15], %s offen' % (V(48 + 4 * dt, 4), sY))
        a('s_add_u32 %s, %s, %s' % (sY, sY, sX))
    for dt in range(20):
        m = 2 * dt
        off = (10 * (m // 20) + (m % 20) % 10) * 5120 + ((m % 20) // 10) * 512
        a('s_waitcnt vmcnt(%d)' % (19 - dt + 2 * dt))
        b = 128 + 8 * (dt & 3)
        for tau in range(2):
            a('%s %s, %s, %s, 0' % (M16, V(b + 4 * tau, 4), V(48 + 4 * dt, 4), V(16 + 4 * tau, 4)))
        a('s_add_u32 %s, %s, %d' % (sT1, sT3, off))
        for tau in range(2):
            a('v_cvt_pk_bf16_f32 %s, %s, %s' % (V(b + 4 * tau), V(b + 4 * tau), V(b + 4 * tau + 1)))
            a('v_cvt_pk_bf16_f32 %s, %s, %s' % (V(b + 4 * tau + 1), V(b + 4 * tau + 2), V(b + 4 * tau + 3)))
            a('buffer_store_dwordx2 %s, %s, %s, %s offen sc1' % (V(b + 4 * tau, 2), V(12 + tau), WS, sT1))
    signal(a, '0 offset:%d' % (D_A0 * 4))


def gemm(a, ntile, srcs, bload):
    n = ntile + 1
    buf = [16, 16 + 4 * n]

    def loads(b):
        bload(buf[b])
        for t in range(ntile):
            s_ = srcs[t // 5]
            if t % 5 < 4:
                a('buffer_load_dwordx4 %s, v1, %s, %s offen offset:%d sc1' % (
                    V(buf[b] + 4 + 4 * t, 4), WS, s_, 1024 * (t % 5)))
            else:
                a('buffer_load_dwordx4 %s, v3, %s, %s offen sc1' % (V(buf[b] + 4 + 4 * t, 4), WS, s_))
                a('s_add_u32 %s, %s, 5120' % (s_, s_))
    for r in range(16 * ntile):
        a('v_accvgpr_write_b32 %s, 0' % A(r))
    a('s_mov_b32 %s, 0' % sK)
    loads(0)
    loop = a.label('ag')
    a(loop + ':')
    for b in range(2):
        loads(b ^ 1)
        for t in range(ntile):
            a('s_waitcnt vmcnt(%d)' % (n + ntile - 1 - t))
            a('%s %s, %s, %s, %s' % (M32, A(16 * t, 16), V(buf[b] + 4 + 4 * t, 4), V(buf[b], 4), A(16 * t, 16)))
    a('s_add_u32 %s, %s, 2' % (sK, sK))
    a('s_cmp_lt_u32 %s, 40' % sK)
    a('s_cbranch_scc1 %s' % loop)
    a('s_waitcnt vmcnt(0)')


def features(a, acc0, dst, tmp):
    p, e = tmp, tmp + 20
    mx, mn, s1, s2 = (V(tmp + 40 + i) for i in range(4))
    for i in range(20):
        a('v_accvgpr_read_b32 %s, %s' % (V(p + i), A(acc0 + i)))
    a('v_max3_f32 %s, %s, %s, %s' % (mx, V(p), V(p + 1), V(p + 2)))
    a('v_min3_f32 %s, %s, %s, %s' % (mn, V(p), V(p + 1), V(p + 2)))
    for i in range(3, 19, 2):
        a('v_max3_f32 %s, %s, %s, %s' % (mx, mx, V(p + i), V(p + i + 1)))
        a('v_min3_f32 %s, %s, %s, %s' % (mn, mn, V(p + i), V(p + i + 1)))
    a('v_max_f32 %s, %s, %s' % (mx, mx, V(p + 19)))
    a('v_min_f32 %s, %s, %s' % (mn, mn, V(p + 19)))
    for i in range(20):
        a('v_sub_f32 %s, %s, %s' % (V(e + i), mn, V(p + i)))
        a('v_sub_f32 %s, %s, %s' % (V(p + i), V(p + i), mx))
    for i in range(40):
        a('v_mul_f32 %s, %s, %s' % (V(p + i), sL2E, V(p + i)))
    for i in range(40):
        a('v_exp_f32 %s, %s' % (V(p + i), V(p + i)))
    for s_, b in ((s1, p), (s2, e)):
        a('v_add_f32 %s, %s, %s' % (s_, V(b), V(b + 1)))
        for i in range(2, 20):
            a('v_add_f32 %s, %s, %s' % (s_, s_, V(b + i)))
        a('v_rcp_f32 %s, %s' % (s_, s_))
    for s_, b in ((s1, p), (s2, e)):
        for i in range(20):
            a('v_mul_f32 %s, %s, %s' % (V(b + i), V(b + i), s_))
    for i in range(20):
        a('v_cvt_pk_bf16_f32 %s, %s, %s' % (V(dst + i), V(p + 2 * i), V(p + 2 * i + 1)))


L_PHI, PHI_ROW = 0, 640
L_V, V_ROW = 128 * 640, 400


def gen_a(a, opt):
    st = (lambda i: wstamp(a, i)) if opt.get('wstamps') else (lambda i: None)
    a('s_sub_u32 %s, %s, 6' % (sT0, sGRP))
    a('s_lshl_b32 %s, %s, 5' % (sA, sT0))
    a('s_add_u32 %s, %s, %s' % (sA, sA, sIDX))
    a('s_lshr_b32 %s, %s, 4' % (sHG, sA))
    a('s_and_b32 %s, %s, 15' % (sTB, sA))
    a('s_mov_b32 %s, 0x%x' % (sL2E, LOG2E))
    a('v_mov_b32 v2, 0x80000000')
    gen_a0(a)
    st(10)
    srd(a, 12, 64, 2621440)
    a('v_lshlrev_b32 v1, 4, v0')
    a('v_add_u32 v3, 4096, v1')
    a('v_and_b32 v4, 31, v0')
    a('v_lshrrev_b32 v5, 5, v0')
    a('v_mul_u32_u24 v6, 1280, v4')
    a('v_mul_u32_u24 v7, 160, v5')
    a('v_add_u32 v6, v6, v7')
    a('s_lshl_b32 %s, %s, 2' % (sT0, sTB))
    a('s_add_u32 %s, %s, %s' % (sT0, sT0, sW))
    a('s_mul_i32 %s, %s, %d' % (sX, sT0, 32 * 1280))
    a('s_mov_b32 %s, 0' % sY)
    a('s_mul_i32 %s, %s, 204800' % (sT0, sHG))
    srcs = ['s44', 's45', 's46']
    for p in range(3):
        a('s_add_u32 %s, %s, 0x%x' % (srcs[p], sT0, AW + p * 4 * 204800))
    wait_dbg(a, [(D_A0, 64)])

    def xload(reg):
        a('buffer_load_dwordx4 %s, v6, s[12:15], %s offen' % (V(reg, 4), sX))
        a('s_add_u32 %s, %s, 16' % (sX, sX))
        a('s_add_u32 %s, %s, 1' % (sY, sY))
        a('s_cmp_eq_u32 %s, 10' % sY)
        a('s_cselect_b32 %s, 160, 0' % sT0)
        a('s_cselect_b32 %s, 0, %s' % (sY, sY))
        a('s_add_u32 %s, %s, %s' % (sX, sX, sT0))
    gemm(a, 15, srcs, xload)
    st(11)
    a('s_lshl_b32 %s, %s, 5' % (sT0, sW))
    a('v_add_u32 v8, %s, v4' % sT0)
    a('v_mul_u32_u24 v9, %d, v8' % PHI_ROW)
    a('v_mul_u32_u24 v7, 320, v5')
    a('v_add_u32 v9, v9, v7')
    a('v_mul_u32_u24 v10, %d, v8' % V_ROW)
    a('v_mul_u32_u24 v7, 192, v5')
    a('v_add3_u32 v10, v10, v7, %s' % sBIGset(a, L_V))
    for m in range(4):
        features(a, 80 + 20 * m, 16, 40)
        for j in range(5):
            a('ds_write_b128 v9, %s offset:%d' % (V(16 + 4 * j, 4), 80 * m + 16 * j))
        for i in range(20):
            a('v_accvgpr_read_b32 %s, %s' % (V(40 + i), A(160 + 20 * m + i)))
        for i in range(10):
            a('v_cvt_pk_bf16_f32 %s, %s, %s' % (V(64 + i), V(40 + 2 * i), V(41 + 2 * i)))
        a('v_mov_b32 v74, 0x3f80')
        a('v_mov_b32 v75, 0')
        for j in range(3):
            a('ds_write_b128 v10, %s offset:%d' % (V(64 + 4 * j, 4), 48 * m + 16 * j))
    a('s_waitcnt lgkmcnt(0)')
    a('s_barrier')
    a('v_lshrrev_b32 v7, 4, v0')
    a('v_bfe_u32 v8, v0, 2, 2')
    a('v_lshl_add_u32 v8, v7, 3, v8')
    a('v_and_b32 v11, 3, v0')
    a('s_mul_i32 %s, %s, 160' % (sT0, sW))
    a('v_mul_u32_u24 v12, %d, v8' % PHI_ROW)
    a('v_add_u32 v12, %s, v12' % sT0)
    a('v_and_b32 v14, 1, v0')
    a('v_lshl_add_u32 v13, v14, 3, v12')
    a('v_lshl_add_u32 v12, v11, 3, v12')
    a('s_mul_i32 %s, %s, 96' % (sT0, sW))
    a('s_add_u32 %s, %s, %d' % (sT0, sT0, L_V))
    a('v_mul_u32_u24 v15, %d, v8' % V_ROW)
    a('v_add_u32 v15, %s, v15' % sT0)
    a('v_lshl_add_u32 v14, v14, 3, v15')
    a('v_lshl_add_u32 v15, v11, 3, v15')
    a('s_lshl_b32 %s, %s, 4' % (sT0, sHG))
    a('s_add_u32 %s, %s, %s' % (sT0, sT0, sTB))
    a('s_mul_i32 %s, %s, 49152' % (sT0, sT0))
    a('s_mul_i32 %s, %s, 12288' % (sT1, sW))
    a('s_add_u32 %s, %s, %s' % (sT0, sT0, sT1))
    a('s_add_u32 %s, %s, 0x%x' % (sX, sT0, KP))
    for hh in range(2):
        for kq in range(4):
            for ft in range(3):
                for s_ in range(2):
                    a('ds_read_b64_tr_b16 %s, %s offset:%d' % (
                        V(16 + 4 * ft + 2 * s_, 2), 'v13' if ft == 2 else 'v12',
                        (32 * kq + 4 * s_) * PHI_ROW + 80 * hh + 32 * ft))
            for dt in range(2):
                for s_ in range(2):
                    a('ds_read_b64_tr_b16 %s, %s offset:%d' % (
                        V(28 + 4 * dt + 2 * s_, 2), 'v14' if dt else 'v15',
                        (32 * kq + 4 * s_) * V_ROW + 48 * hh + 32 * dt))
            a('s_waitcnt lgkmcnt(0)')
            for ft in range(3):
                for dt in range(2):
                    D = V(40 + 24 * hh + 8 * ft + 4 * dt, 4)
                    a('%s %s, %s, %s, %s' % (M16, D, V(16 + 4 * ft, 4), V(28 + 4 * dt, 4), '0' if kq == 0 else D))
    for t in range(12):
        a('buffer_store_dwordx4 %s, v1, %s, %s offen offset:%d sc1' % (V(40 + 4 * t, 4), WS, sX, 1024 * (t & 3)))
        if t & 3 == 3:
            a('s_add_u32 %s, %s, 4096' % (sX, sX))
    a('s_lshl_b32 %s, %s, 2' % (sT1, sHG))
    a('s_add_u32 %s, %s, %d' % (sT1, sT1, D_A1 * 4))
    signal(a, sT1)
    for m in range(4):
        features(a, 20 * m, 160 + 20 * m, 40)
    a('s_add_u32 %s, %s, %d' % (sT2, sHG, D_A1))
    wait_dbg(a, [(sT2, 16)])
    st(12)
    nored = a.label('nored')
    a('s_cmp_eq_u32 %s, 3' % sW)
    a('s_cbranch_scc1 %s' % nored)
    a('s_mul_i32 %s, %s, 3' % (sT0, sTB))
    a('s_add_u32 %s, %s, %s' % (sT0, sT0, sW))
    a('s_mul_i32 %s, %s, %d' % (sT1, sHG, 16 * 49152))
    a('s_lshl_b32 %s, %s, 10' % (sT2, sT0))
    a('s_add_u32 %s, %s, %s' % (sT1, sT1, sT2))
    a('s_add_u32 %s, %s, 0x%x' % (sX, sT1, KP))
    for j in range(16):
        a('buffer_load_dwordx4 %s, v1, %s, %s offen sc1' % (V(16 + 4 * j, 4), WS, sX))
        a('s_add_u32 %s, %s, 49152' % (sX, sX))
    a('s_mul_i32 %s, %s, 43' % (sT1, sT0))
    a('s_lshr_b32 %s, %s, 8' % (sT1, sT1))
    a('s_mul_i32 %s, %s, 6' % (sT2, sT1))
    a('s_sub_u32 %s, %s, %s' % (sT0, sT0, sT2))
    a('s_lshr_b32 %s, %s, 1' % (sT2, sT0))
    a('s_and_b32 %s, %s, 1' % (sT0, sT0))
    a('s_and_b32 %s, %s, 3' % (sT3, sT1))
    a('s_lshl_b32 %s, %s, 1' % (sT3, sT3))
    a('s_add_u32 %s, %s, %s' % (sT3, sT3, sT0))
    a('s_mul_i32 %s, %s, 5120' % (sT3, sT3))
    a('s_lshr_b32 %s, %s, 2' % (sT1, sT1))
    a('s_mul_i32 %s, %s, %d' % (sT1, sT1, 36 * 16))
    a('s_add_u32 %s, %s, %s' % (sT3, sT3, sT1))
    a('s_mul_i32 %s, %s, 40960' % (sT1, sHG))
    a('s_add_u32 %s, %s, %s' % (sT3, sT3, sT1))
    a('s_add_u32 %s, %s, 0x%x' % (sT3, sT3, KF))
    a('s_lshl_b32 %s, %s, 1' % (sT2, sT2))
    a('v_lshrrev_b32 v8, 1, v7')
    a('v_add_u32 v8, %s, v8' % sT2)
    a('v_cmp_gt_u32 vcc, 5, v8')
    a('v_lshlrev_b32 v8, 10, v8')
    a('v_bfe_u32 v11, v0, 2, 2')
    a('v_lshl_add_u32 v8, v11, 7, v8')
    a('v_and_b32 v11, 3, v0')
    a('v_lshl_add_u32 v8, v11, 4, v8')
    a('v_and_b32 v11, 1, v7')
    a('v_lshl_add_u32 v8, v11, 3, v8')
    a('v_mov_b32 v11, 0x80000000')
    a('v_cndmask_b32 v8, v11, v8, vcc')
    for j in range(1, 16):
        a('s_waitcnt vmcnt(%d)' % (15 - j))
        for r in range(4):
            a('v_add_f32 %s, %s, %s' % (V(16 + r), V(16 + r), V(16 + 4 * j + r)))
    a('v_cvt_pk_bf16_f32 v16, v16, v17')
    a('v_cvt_pk_bf16_f32 v17, v18, v19')
    a('buffer_store_dwordx2 v[16:17], v8, %s, %s offen sc1' % (WS, sT3))
    a(nored + ':')
    a('s_lshl_b32 %s, %s, 2' % (sT1, sHG))
    a('s_add_u32 %s, %s, %d' % (sT1, sT1, D_A2 * 4))
    signal(a, sT1)
    a('v_bfe_u32 v8, v0, 2, 1')
    a('v_cmp_eq_u32 vcc, v8, v5')
    a('v_mov_b32 v11, 0x80000000')
    a('v_cndmask_b32 v8, v11, v1, vcc')
    a('s_mul_i32 %s, %s, 40960' % (sX, sHG))
    a('s_add_u32 %s, %s, 0x%x' % (sX, sX, KF))
    a('s_mov_b32 %s, 0x358637bd' % sY)
    a('s_add_u32 %s, %s, %d' % (sT2, sHG, D_A2))
    wait_dbg(a, [(sT2, 16)])
    for m in range(4):
        for j in range(10):
            a('buffer_load_dwordx4 %s, v8, %s, %s offen sc1' % (V(16 + 4 * j, 4), WS, sX))
            a('s_add_u32 %s, %s, 1024' % (sX, sX))
        for j in range(10):
            a('s_waitcnt vmcnt(%d)' % (9 - j))
            D = V(64 + 16 * (j // 5), 16)
            a('%s %s, %s, %s, %s' % (M32, D, V(16 + 4 * j, 4), V(160 + 20 * m + 4 * (j % 5), 4), '0' if j % 5 == 0 else D))
        a('v_add_f32 v84, %s, v84' % sY)
        a('v_rcp_f32 v84, v84')
        for i in range(20):
            a('v_mul_f32 %s, %s, v84' % (V(64 + i), V(64 + i)))
        for i in range(10):
            a('v_cvt_pk_bf16_f32 %s, %s, %s' % (V(100 + 10 * m + i), V(64 + 2 * i), V(65 + 2 * i)))
    a('s_lshl_b32 %s, %s, 2' % (sT0, sTB))
    a('s_add_u32 %s, %s, %s' % (sT0, sT0, sW))
    a('s_mul_i32 %s, %s, 40960' % (sT0, sT0))
    a('s_add_u32 %s, %s, 0x%x' % (sP, sT0, OA))
    a('s_mul_i32 %s, %s, 10240' % (sT1, sHG))
    a('s_add_u32 %s, %s, %s' % (sX, sP, sT1))
    for u in range(10):
        a('buffer_store_dwordx4 %s, v1, %s, %s offen sc1' % (V(100 + 4 * u, 4), WS, sX))
        a('s_add_u32 %s, %s, 1024' % (sX, sX))
    skip = a.label('sig3')
    a('s_and_b32 %s, %s, 3' % (sH, sTB))
    a('s_lshl_b32 %s, %s, 3' % (sH, sH))
    a('s_lshr_b32 %s, %s, 2' % (sT2, sTB))
    a('s_add_u32 %s, %s, %d' % (sT2, sT2, D_A3))
    a('s_lshl_b32 %s, %s, 2' % (sT1, sT2))
    a('s_lshl_b32 %s, 1, %s' % (sT0, sH))
    a('s_waitcnt vmcnt(0)')
    a('s_barrier')
    a('s_cmp_lg_u32 %s, 0' % sW)
    a('s_cbranch_scc1 %s' % skip)
    a('s_mov_b64 exec, 1')
    a('v_mov_b32 v2, %s' % sT0)
    a('buffer_atomic_add v2, off, %s, %s sc1' % (DBG, sT1))
    a('s_mov_b64 exec, -1')
    a(skip + ':')
    again = a.label('w3')
    a('s_mov_b32 %s, 0' % sSpin)
    a(again + ':')
    a('s_sleep 4')
    a('buffer_load_dword v2, off, %s, %s sc1' % (DBG, sT1))
    spin_check(a)
    a('s_waitcnt vmcnt(0)')
    a('v_bfe_u32 v2, v2, %s, 8' % sH)
    a('v_cmp_ne_u32 vcc, 4, v2')
    a('s_cbranch_vccnz %s' % again)
    st(13)
    a('s_mul_i32 %s, %s, 204800' % (sT0, sHG))
    a('s_add_u32 s44, %s, 0x%x' % (sT0, AW + 12 * 204800))

    def oload(reg):
        a('buffer_load_dwordx4 %s, v1, %s, %s offen sc1' % (V(reg, 4), WS, sP))
        a('s_add_u32 %s, %s, 1024' % (sP, sP))
    gemm(a, 5, ['s44'], oload)
    srd(a, 12, 86, 5242880)
    a('v_mul_u32_u24 v6, 2560, v4')
    a('v_mul_u32_u24 v7, 160, v5')
    a('v_add_u32 v6, v6, v7')
    a('s_lshl_b32 %s, %s, 2' % (sT0, sTB))
    a('s_add_u32 %s, %s, %s' % (sT0, sT0, sW))
    a('s_mul_i32 %s, %s, %d' % (sT0, sT0, 32 * 2560))
    a('s_mul_i32 %s, %s, 320' % (sT1, sHG))
    a('s_add_u32 %s, %s, %s' % (sT0, sT0, sT1))
    for u in range(10):
        b = 16 + 12 * (u & 3)
        for j in range(8):
            a('v_accvgpr_read_b32 %s, %s' % (V(b + 4 + j), A(8 * u + j)))
        for j in range(4):
            a('v_cvt_pk_bf16_f32 %s, %s, %s' % (V(b + j), V(b + 4 + 2 * j), V(b + 5 + 2 * j)))
        a('buffer_store_dwordx4 %s, v6, s[12:15], %s offen offset:%d' % (V(b, 4), sT0, 16 * u))
    st(14)
    a('s_branch L_end')


def sBIGset(a, val):
    a('s_mov_b32 %s, %d' % (sBIG, val))
    return sBIG
```

```python
import re

REG_RE = re.compile(r'\b([vas])\[(\d+):(\d+)\]|\b([vas])(\d+)\b|\b(vcc|exec|m0|scc)\b')


def regs_of(tok):
    out = set()
    for m in REG_RE.finditer(tok):
        if m.group(1):
            for i in range(int(m.group(2)), int(m.group(3)) + 1):
                out.add(m.group(1) + str(i))
        elif m.group(4):
            out.add(m.group(4) + m.group(5))
        else:
            out.add(m.group(6))
    return out


TRANS = ('v_exp_f32', 'v_log_f32', 'v_rcp_f32', 'v_rsq_f32', 'v_sqrt_f32', 'v_sin_f32', 'v_cos_f32',
         'v_rcp_iflag_f32')


class Ins:
    __slots__ = ('text', 'op', 'defs', 'uses', 'kind', 'passes', 'srcc', 'ab', 'states', 'data', 'wide')

    def __init__(self, text):
        self.text = text
        t = text.split(';')[0].strip()
        parts = t.split(None, 1)
        self.op = op = parts[0]
        rest = parts[1] if len(parts) > 1 else ''
        ops = [o.strip() for o in rest.split(',')] if rest else []
        self.defs, self.uses = set(), set()
        self.kind = 'other'
        self.passes = 0
        self.srcc = set()
        self.ab = set()
        self.data = set()
        self.wide = False
        self.states = 1
        if op == 's_nop':
            self.states = int(rest, 0) + 1
            self.kind = 'nop'
        elif op.startswith('v_mfma') or op.startswith('v_smfmac'):
            self.kind = 'mfma'
            self.passes = 8 if '32x32' in op else 4
            self.defs = regs_of(ops[0])
            self.ab = regs_of(ops[1]) | regs_of(ops[2])
            if op.startswith('v_smfmac'):
                self.srcc = set(self.defs)
                self.ab |= regs_of(ops[3].split()[0])
            else:
                self.srcc = regs_of(ops[3].split()[0])
            self.uses = self.ab | self.srcc
        elif op.startswith('v_'):
            self.kind = 'valu'
            if op.startswith('v_cmp'):
                self.defs = regs_of(ops[0])
                for o in ops[1:]:
                    self.uses |= regs_of(o)
                if op.startswith('v_cmpx'):
                    self.defs.add('exec')
            elif op.startswith('v_permlane') and 'swap' in op:
                self.defs = regs_of(ops[0]) | regs_of(ops[1])
                self.uses = set(self.defs)
            elif op.startswith(('v_add_co', 'v_sub_co', 'v_addc_co', 'v_subb_co', 'v_div_scale')):
                self.defs = regs_of(ops[0]) | regs_of(ops[1])
                for o in ops[2:]:
                    self.uses |= regs_of(o)
            else:
                self.defs = regs_of(ops[0])
                for o in ops[1:]:
                    self.uses |= regs_of(o)
                if op.startswith(('v_fmac', 'v_pk_fmac', 'v_writelane', 'v_dot2c')) or 'dpp' in op or 'row_' in rest \
                        or 'quad_perm' in rest:
                    self.uses |= self.defs
        elif op.startswith('ds_'):
            self.kind = 'ds'
            if op.startswith(('ds_read', 'ds_bpermute', 'ds_permute', 'ds_swizzle')) or '_rtn' in op:
                self.defs = regs_of(ops[0])
                for o in ops[1:]:
                    self.uses |= regs_of(o.split()[0])
            else:
                for o in ops:
                    self.uses |= regs_of(o.split()[0])
        elif op.startswith(('buffer_', 'global_')):
            self.kind = 'vmem'
            if op.startswith(('buffer_inv', 'buffer_wbl2')):
                pass
            elif ' lds' in (' ' + rest) or '_lds_' in op:
                for o in ops:
                    self.uses |= regs_of(o.split()[0])
                self.uses.add('m0')
                self.kind = 'vmem'
                self.data = set()
                self.wide = False
            elif 'load' in op:
                self.defs = regs_of(ops[0])
                for o in ops[1:]:
                    self.uses |= regs_of(o.split()[0])
            else:
                for o in ops:
                    self.uses |= regs_of(o.split()[0])
                di = 0 if op.startswith('buffer_') else 1
                self.data = regs_of(ops[di])
                self.wide = ('x3' in op or 'x4' in op or 'cmpswap_x2' in op)
                if 'atomic' in op and ' sc0' in (' ' + rest):
                    self.defs = regs_of(ops[0])
        elif op.startswith('s_'):
            self.kind = 'salu'
            if op.startswith(('s_cmp', 's_bitcmp')):
                self.defs = {'scc'}
                for o in ops:
                    self.uses |= regs_of(o)
            elif op.startswith(('s_waitcnt', 's_barrier', 's_branch', 's_cbranch', 's_endpgm', 's_sleep', 's_setprio')):
                if 'vcc' in op:
                    self.uses = {'vcc'}
                if 'exec' in op:
                    self.uses = {'exec'}
            else:
                if ops:
                    self.defs = regs_of(ops[0])
                for o in ops[1:]:
                    self.uses |= regs_of(o)
                if 'saveexec' in op:
                    self.defs.add('exec')


def need(prev, cur):
    n = 0
    isreg = lambda s: {r for r in s if r[0] in 'va' and r not in ('vcc',)}
    issg = lambda s: {r for r in s if r[0] == 's' and r != 'scc'} | ({'vcc'} if 'vcc' in s else set())
    if prev.kind == 'mfma':
        big = {4: 8, 8: 12}[prev.passes]
        mid = {4: 6, 8: 10}[prev.passes]
        if cur.kind == 'mfma':
            if prev.defs & cur.ab:
                n = max(n, big)
            ov = prev.defs & cur.srcc
            if ov and not (cur.srcc == prev.defs and cur.op == prev.op):
                n = max(n, mid)
            if (prev.defs & cur.defs) and not (cur.srcc == prev.defs and cur.op == prev.op):
                n = max(n, mid)
        elif cur.kind in ('valu', 'ds', 'vmem'):
            if prev.defs & (cur.uses | cur.defs):
                n = max(n, big)
            if cur.kind == 'valu' and (prev.srcc & cur.defs):
                n = max(n, {4: 3, 8: 7}[prev.passes])
    if prev.kind == 'valu':
        vd = isreg(prev.defs)
        if cur.kind == 'mfma' and (vd & cur.uses):
            n = max(n, 2)
        if cur.kind == 'mfma' and 'exec' in prev.defs:
            n = max(n, 4)
        if cur.kind == 'valu':
            if cur.op.startswith('v_permlane') and (vd & cur.uses):
                n = max(n, 2)
            if cur.op.startswith('v_permlane') and 'exec' in prev.defs:
                n = max(n, 4)
            if ('dpp' in cur.op or 'row_' in cur.text or 'quad_perm' in cur.text) and (vd & cur.uses):
                n = max(n, 2)
            if ('dpp' in cur.op or 'row_' in cur.text or 'quad_perm' in cur.text) and 'exec' in prev.defs:
                n = max(n, 5)
            if cur.op.startswith(('v_readlane', 'v_readfirstlane')) and (vd & cur.uses):
                n = max(n, 1)
            if cur.op.startswith(('v_readlane', 'v_readfirstlane', 'v_writelane')) and 'exec' in prev.defs:
                n = max(n, 4)
            if prev.op.startswith(TRANS) and not cur.op.startswith(TRANS) and (vd & cur.uses):
                n = max(n, 1)
            if prev.op.startswith(TRANS) and cur.op.startswith(TRANS) and (vd & cur.uses):
                n = max(n, 1)
            sd = issg(prev.defs)
            if sd & cur.uses:
                n = max(n, 4 if cur.op.startswith(('v_readlane', 'v_writelane', 'v_div_fmas')) else 2)
            if cur.op.startswith('v_cndmask') and 'vcc' in sd and (len(cur.text.split(',')) < 4 or 'vcc' in cur.text):
                n = max(n, 2)
            if 'op_sel' in prev.text or 'sdwa' in prev.op:
                if vd & (cur.uses | cur.defs):
                    n = max(n, 1)
        if cur.kind == 'vmem' and (issg(prev.defs) & cur.uses):
            n = max(n, 5)
        if cur.kind == 'salu' and (issg(prev.defs) & (cur.uses | cur.defs)):
            n = max(n, 1)
    if prev.kind == 'vmem' and prev.wide and prev.data:
        if cur.kind == 'valu' and (prev.data & cur.defs):
            n = max(n, 2)
        elif prev.data & cur.defs:
            n = max(n, 1)
    if prev.kind == 'salu' and 'm0' in prev.defs and 'm0' in cur.uses and cur.kind in ('vmem', 'ds'):
        n = max(n, 1)
    if prev.kind == 'salu' and 'exec' in prev.defs and cur.kind == 'valu' and (
            'dpp' in cur.op or 'row_' in cur.text):
        n = max(n, 0)
    return n


class Asm:
    def __init__(self):
        self.lines = []
        self.nlabel = 0

    def __call__(self, text):
        for ln in text.split('\n'):
            s = ln.strip()
            if not s:
                continue
            if s.startswith(';') or s.startswith('.') or s.split(';')[0].strip().endswith(':'):
                self.lines.append(s)
            else:
                self.lines.append(Ins(s))

    def label(self, stem):
        self.nlabel += 1
        return 'L_%s_%d' % (stem, self.nlabel)

    def finish(self):
        out = []
        window = []
        pads = 0
        t = 0
        lastm = None
        for x in self.lines:
            if isinstance(x, str):
                out.append(x if x.endswith(':') or x.startswith('.') else '  ' + x)
                continue
            tx = t
            if x.kind == 'mfma' and lastm is not None:
                tx = max(tx, lastm[0] + lastm[1])
            req = 0
            for p, tp in reversed(window):
                n = need(p, x)
                if n:
                    req = max(req, tp + 1 + n - tx)
            if req > 0:
                req += tx - t
                while req > 0:
                    k = min(req, 16)
                    out.append('  s_nop %d' % (k - 1))
                    t += k
                    req -= k
                    pads += 1
                tx = max(tx, t)
            out.append('  ' + x.text)
            window.append((x, tx))
            if x.kind == 'mfma':
                lastm = (tx, x.passes)
            t = tx + x.states
            if x.op in ('s_branch', 's_endpgm', 's_setpc_b64'):
                window = []
                lastm = None
            window = [(p, tp) for p, tp in window if t - tp <= 24]
        self.pads = pads
        return '\n'.join(out) + '\n'
```

```python
import math
import struct
from layout import *
from chain import sW, sGRP, sIDX, sT0, sT1, sT2, sT3, sSpin, WS, DBG, srd, spin_check, rho, VQ
from workers import V, A, wait_dbg, wstamp, sJ

CBITS = struct.unpack('<I', struct.pack('<f', 128 ** -0.5 * math.log2(math.e)))[0]
sS, sH, sHG, sC, sO = 's33', 's34', 's35', 's36', 's37'


def poll(a, vaddr, soff, cmp_text, sleep):
    again, first = a.label('poll'), a.label('pollf')
    a('s_mov_b32 %s, 0' % sSpin)
    a('s_branch %s' % first)
    a(again + ':')
    a('s_sleep %d' % sleep)
    a(first + ':')
    a('buffer_load_dword v2, %s, %s, %s offen sc1' % (vaddr, WS, soff))
    spin_check(a)
    a('s_waitcnt vmcnt(0)')
    a(cmp_text)
    a('s_cbranch_vccnz %s' % again)


def gen_b2(a, opt):
    Q, K, VV, KM, VM = 16, 48, 80, 112, 128
    S00, S01, S11, S0 = 136, 140, 144, 148
    PX, PM, ONE, L, O = 156, 164, 172, 176, 184
    mf = lambda D, x, y, C: a('v_mfma_f32_16x16x32_bf16 %s, %s, %s, %s' % (V(D, 4), V(x, 4), V(y, 4), C))
    m16 = lambda D, x, y: a('v_mfma_f32_16x16x16_bf16 %s, %s, %s, %s' % (V(D, 4), V(x, 2), V(y, 2), V(D, 4)))
    a('L_b2:')
    a('s_sub_u32 %s, %s, 2' % (sT0, sGRP))
    a('s_mul_i32 %s, %s, 12' % (sT0, sT0))
    a('s_add_u32 %s, %s, %s' % (sT0, sT0, sIDX))
    a('s_sub_u32 %s, %s, 20' % (sT0, sT0))
    a('s_and_b32 %s, %s, 7' % (sHG, sT0))
    a('s_lshr_b32 %s, %s, 3' % (sS, sT0))
    a('s_lshl_b32 %s, %s, 2' % (sH, sHG))
    a('s_add_u32 %s, %s, %s' % (sH, sH, sW))
    a('s_mov_b32 %s, 0x%x' % (sC, CBITS))
    a('v_lshlrev_b32 v1, 4, v0')
    a('v_lshrrev_b32 v4, 4, v0')
    rho(a, 'v5', 'v6')
    a('v_lshl_add_u32 v5, v4, 3, v5')
    a('v_lshlrev_b32 v5, 4, v5')
    a('v_lshlrev_b32 v6, 3, v0')
    a('v_and_b32 v7, 1, v0')
    a('v_lshlrev_b32 v7, 12, v7')
    a('v_and_b32 v8, 15, v0')
    for r in range(4):
        a('v_lshl_add_u32 v9, v4, 2, %d' % r)
        a('v_cmp_le_u32 s[%d:%d], v9, v8' % (56 + 2 * r, 57 + 2 * r))
    a('v_mov_b32 v10, 0xff800000')
    for r in range(4):
        a('v_mov_b32 %s, 0x3f803f80' % V(ONE + r))
    for r in (PX + 2, PX + 3, PM + 1, PM + 2, PM + 5, PM + 6):
        a('v_mov_b32 %s, 0' % V(r))
    wait_dbg(a, [(D_INIT, 64)])
    loop = a.label('b2loop')
    a(loop + ':')
    a('s_lshr_b32 %s, %s, 3' % (sT2, sS))
    a('s_add_u32 %s, %s, %d' % (sT3, sT2, D_Q))
    a('s_add_u32 %s, %s, %d' % (sT2, sT2, D_KV))
    wait_dbg(a, [(sT2, 32), (sT3, 16)])
    a('s_lshl_b32 %s, %s, 5' % (sT0, sS))
    a('s_add_u32 %s, %s, %s' % (sT0, sT0, sH))
    a('s_lshl_b32 %s, %s, 12' % (sO, sT0))
    a('s_add_u32 %s, %s, 0x%x' % (sO, sO, KMVM))
    a('s_lshl_b32 %s, %s, 13' % (sT1, sT0))
    a('s_add_u32 %s, %s, 0x%x' % (sT1, sT1, QX))
    a('s_lshl_b32 %s, %s, 14' % (sT0, sT0))
    for base, reg in ((sT0, K), (sT1, Q), (None, VV)):
        if base is None:
            base = sT0
        for j in range(8):
            a('buffer_load_dwordx4 %s, v1, %s, %s offen offset:%d sc1' % (V(reg + 4 * j, 4), WS, base, 1024 * (j & 3)))
            if j & 3 == 3:
                a('s_add_u32 %s, %s, 4096' % (base, base))
    a('s_waitcnt vmcnt(8)')
    for D, kt, qt in ((S00, 0, 0), (S01, 0, 1), (S11, 1, 1)):
        for ks in range(4):
            mf(D, K + 16 * kt + 4 * ks, Q + 16 * qt + 4 * ks, '0' if ks == 0 else V(D, 4))
    a('s_lshl_b32 %s, %s, 7' % (sT0, sH))
    a('s_add_u32 %s, %s, 0x%x' % (sT0, sT0, FLG))
    for D in (S00, S11):
        for r in range(4):
            a('v_cndmask_b32 %s, v10, %s, s[%d:%d]' % (V(D + r), V(D + r), 56 + 2 * r, 57 + 2 * r))
    a('v_max3_f32 v11, %s, %s, %s' % (V(S00), V(S00 + 1), V(S00 + 2)))
    a('v_max_f32 v11, v11, %s' % V(S00 + 3))
    a('v_max3_f32 v12, %s, %s, %s' % (V(S01), V(S01 + 1), V(S01 + 2)))
    a('v_max3_f32 v12, v12, %s, %s' % (V(S01 + 3), V(S11)))
    a('v_max3_f32 v12, v12, %s, %s' % (V(S11 + 1), V(S11 + 2)))
    a('v_max_f32 v12, v12, %s' % V(S11 + 3))
    poll(a, 'v7', sT0, 'v_cmp_ge_u32 vcc, %s, v2' % sS, 2)
    for ks in range(4):
        a('buffer_load_dwordx4 %s, v5, %s, %s offen offset:%d sc1' % (V(KM + 4 * ks, 4), WS, sO, 512 * ks))
    for p in range(4):
        a('buffer_load_dwordx2 %s, v6, %s, %s offen offset:%d sc1' % (V(VM + 2 * p, 2), WS, sO, 2048 + 512 * p))
    for ks in range(4):
        a('s_waitcnt vmcnt(%d)' % (7 - ks))
        for qt in range(2):
            mf(S0 + 4 * qt, KM + 4 * ks, Q + 16 * qt + 4 * ks, '0' if ks == 0 else V(S0 + 4 * qt, 4))
    a('s_lshl_b32 %s, %s, 18' % (sT0, sS))
    a('s_lshl_b32 %s, %s, 12' % (sT1, sH))
    a('s_add_u32 %s, %s, %s' % (sT0, sT0, sT1))
    a('s_add_u32 %s, %s, 0x%x' % (sT0, sT0, OB))
    a('s_add_u32 %s, %s, 0x20000' % (sT1, sT0))
    for qt in range(2):
        a('v_max3_f32 %s, %s, %s, %s' % (V(11 + qt), V(11 + qt), V(S0 + 4 * qt), V(S0 + 4 * qt + 1)))
    for op in ('v_permlane32_swap_b32', 'v_permlane16_swap_b32'):
        for qt in range(2):
            a('v_mov_b32 %s, %s' % (V(13 + qt), V(11 + qt)))
        for qt in range(2):
            a('%s %s, %s' % (op, V(11 + qt), V(13 + qt)))
        for qt in range(2):
            a('v_max_f32 %s, %s, %s' % (V(11 + qt), V(11 + qt), V(13 + qt)))
    for qt in range(2):
        a('v_mul_f32 %s, %s, %s' % (V(11 + qt), sC, V(11 + qt)))
    vals = [(S00 + r, 0) for r in range(4)] + [(S0, 0), (S0 + 1, 0)] + \
           [(S01 + r, 1) for r in range(8)] + [(S0 + 4, 1), (S0 + 5, 1)]
    for r, qt in vals:
        a('v_fma_f32 %s, %s, %s, -%s' % (V(r), V(r), sC, V(11 + qt)))
    for r, qt in vals:
        a('v_exp_f32 %s, %s' % (V(r), V(r)))
    cv = lambda d, x: a('v_cvt_pk_bf16_f32 %s, %s, %s' % (V(d), V(x), V(x + 1)))
    cv(PX, S00)
    cv(PX + 1, S00 + 2)
    for j in range(4):
        cv(PX + 4 + j, S01 + 2 * j)
    for qt in range(2):
        cv(PM + 4 * qt, S0 + 4 * qt)
        cv(PM + 4 * qt + 3, S0 + 4 * qt)
    a('s_waitcnt vmcnt(0)')
    for qt in range(2):
        mf(L + 4 * qt, ONE, PX + 4 * qt, '0')
        for et in range(8):
            mf(O + 32 * qt + 4 * et, VV + 4 * et, PX + 4 * qt, '0')
        m16(L + 4 * qt, ONE, PM + 4 * qt)
        for et in range(8):
            m16(O + 32 * qt + 4 * et, VM + 2 * (et >> 1), PM + 4 * qt + 2 * (et & 1))
    for qt in range(2):
        a('v_rcp_f32 %s, %s' % (V(L + 4 * qt), V(L + 4 * qt)))
    for qt in range(2):
        for p in range(4):
            D = O + 32 * qt + 8 * p
            for r in range(8):
                a('v_mul_f32 %s, %s, %s' % (V(D + r), V(D + r), V(L + 4 * qt)))
            for j in range(4):
                cv(D + j, D + 2 * j)
            a('buffer_store_dwordx4 %s, v1, %s, %s offen offset:%d sc1' % (V(D, 4), WS, (sT0, sT1)[qt], 1024 * p))
    a('s_lshl_b32 %s, %s, 8' % (sT0, sS))
    a('s_lshl_b32 %s, %s, 5' % (sT1, sHG))
    a('s_add_u32 %s, %s, %s' % (sT0, sT0, sT1))
    a('s_add_u32 %s, %s, 0x%x' % (sT0, sT0, FLG2))
    a('s_waitcnt vmcnt(0)')
    a('s_barrier')
    nf = a.label('b2nf')
    a('s_cmp_lg_u32 %s, 0' % sW)
    a('s_cbranch_scc1 %s' % nf)
    a('buffer_store_dword v10, off, %s, %s sc1' % (WS, sT0))
    a(nf + ':')
    a('s_add_u32 %s, %s, 6' % (sS, sS))
    a('s_cmp_lt_u32 %s, 64' % sS)
    a('s_cbranch_scc1 %s' % loop)
    if opt.get('wstamps'):
        wstamp(a, 10)
    a('s_branch L_end')


def gen_b3(a, opt):
    OBF, ACC = 16, 144
    sHS, sPar, sM0 = 's33', 's34', 's35'
    a('L_b3:')
    srd(a, 12, 82, 5242880)
    srd(a, 16, 86, 5242880)
    a('v_lshrrev_b32 v4, 2, v0')
    a('v_mul_u32_u24 v4, 1280, v4')
    a('v_and_b32 v5, 3, v0')
    a('v_lshl_add_u32 v4, v5, 4, v4')
    a('s_mul_i32 %s, %s, %d' % (sT2, sW, 1024 * 1280))
    a('s_lshl_b32 %s, %s, 6' % (sT1, sIDX))
    a('s_add_u32 %s, %s, %s' % (sT2, sT2, sT1))
    a('s_lshl_b32 %s, %s, 15' % (sM0, sW))
    q = VQ(a)

    def issue(i):
        a('s_add_u32 m0, %s, %d' % (sM0, (i % 8) * 4096))
        for j in range(4):
            a('s_add_u32 %s, %s, 0x%x' % (sT0, sT2, (64 * i + 16 * j) * 1280 - 1024 * j))
            a('buffer_load_dwordx4 v4, s[12:15], %s offen offset:%d lds' % (sT0, 1024 * j))
        q.add(i, 4)
    for i in range(8):
        issue(i)
    a('v_lshrrev_b32 v6, 2, v0')
    a('v_lshlrev_b32 v6, 6, v6')
    a('v_lshl_add_u32 v6, v5, 4, v6')
    a('v_add_u32 v6, %s, v6' % sM0)
    a('v_lshlrev_b32 v1, 4, v0')
    for i in range(16):
        q.wait(i)
        for pp in range(2):
            for tau in range(2):
                for s_ in range(2):
                    r = 8 * (2 * i + pp) + 4 * tau + 2 * s_
                    a('ds_read_b64_tr_b16 %s, v6 offset:%d' % (
                        A(r, 2), (i % 8) * 4096 + pp * 2048 + s_ * 1024 + tau * 8))
        a('s_waitcnt lgkmcnt(0)')
        if i + 8 < 16:
            issue(i + 8)
    a('v_and_b32 v7, 1, v0')
    a('s_lshl_b32 %s, %s, 6' % (sT0, sW))
    a('v_lshl_add_u32 v7, v7, 5, %s' % sT0)
    a('v_and_b32 v8, 15, v0')
    a('v_mul_u32_u24 v8, 2560, v8')
    a('v_lshrrev_b32 v9, 4, v0')
    a('v_lshl_add_u32 v8, v9, 4, v8')
    a('s_lshl_b32 %s, %s, 6' % (sT0, sIDX))
    a('s_add_u32 %s, %s, 1280' % (sT0, sT0))
    a('v_add_u32 v8, %s, v8' % sT0)
    a('s_lshl_b32 %s, %s, 11' % (sT0, sW))
    a('v_add_u32 v9, %s, v1' % sT0)
    a('s_sub_u32 %s, %s, 2' % (sHS, sGRP))
    wait_dbg(a, [(D_INIT, 64)])
    a('s_barrier')
    if opt.get('wstamps'):
        wstamp(a, 11)
    loop = a.label('b3loop')
    a(loop + ':')
    a('s_lshr_b32 %s, %s, 1' % (sT0, sHS))
    a('s_lshl_b32 %s, %s, 8' % (sT0, sT0))
    a('s_add_u32 %s, %s, 0x%x' % (sT0, sT0, FLG2))
    a('s_lshl_b32 %s, %s, 17' % (sT2, sHS))
    a('s_lshl_b32 %s, %s, 15' % (sT1, sW))
    a('s_add_u32 %s, %s, %s' % (sT2, sT2, sT1))
    a('s_add_u32 %s, %s, 0x%x' % (sT2, sT2, OB))
    poll(a, 'v7', sT0, 'v_cmp_eq_u32 vcc, 0, v2', 2)
    for p in range(32):
        a('buffer_load_dwordx4 %s, v1, %s, %s offen offset:%d sc1' % (V(OBF + 4 * p, 4), WS, sT2, 1024 * (p & 3)))
        if p & 3 == 3:
            a('s_add_u32 %s, %s, 4096' % (sT2, sT2))
    for p in range(32):
        a('s_waitcnt vmcnt(%d)' % (31 - p))
        for tau in range(2):
            D = V(ACC + 4 * tau, 4)
            a('v_mfma_f32_16x16x32_bf16 %s, %s, %s, %s' % (D, A(8 * p + 4 * tau, 4), V(OBF + 4 * p, 4), '0' if p == 0 else D))
    w0, nx = a.label('b3w0'), a.label('b3nx')
    a('s_mul_i32 %s, %s, %d' % (sT0, sHS, 16 * 2560))
    a('s_cmp_eq_u32 %s, 0' % sW)
    a('s_cbranch_scc1 %s' % w0)
    a('s_nop 7')
    a('ds_write_b128 v9, %s' % V(ACC, 4))
    a('ds_write_b128 v9, %s offset:1024' % V(ACC + 4, 4))
    a('s_waitcnt lgkmcnt(0)')
    a('s_barrier')
    a('s_branch %s' % nx)
    a(w0 + ':')
    a('s_barrier')
    for j in range(6):
        a('ds_read_b128 %s, v9 offset:%d' % (V(OBF + 4 * j, 4), 2048 + 1024 * j))
    for w in range(3):
        a('s_waitcnt lgkmcnt(%d)' % (4 - 2 * w))
        for r in range(8):
            a('v_add_f32 %s, %s, %s' % (V(ACC + r), V(ACC + r), V(OBF + 8 * w + r)))
    for j in range(4):
        a('v_cvt_pk_bf16_f32 %s, %s, %s' % (V(ACC + j), V(ACC + 2 * j), V(ACC + 2 * j + 1)))
    a('buffer_store_dwordx4 %s, v8, s[16:19], %s offen' % (V(ACC, 4), sT0))
    a(nx + ':')
    a('v_xor_b32 v9, 0x2000, v9')
    a('s_add_u32 %s, %s, 4' % (sHS, sHS))
    a('s_cmp_lt_u32 %s, 128' % sHS)
    a('s_cbranch_scc1 %s' % loop)
    if opt.get('wstamps'):
        wstamp(a, 12)
    a('s_branch L_end')


def gen_b23(a, opt):
    a('s_cmp_ge_u32 %s, 6' % sGRP)
    a('s_cbranch_scc1 L_parta')
    a('s_cmp_ge_u32 %s, 20' % sIDX)
    a('s_cbranch_scc1 L_b2')
    gen_b3(a, opt)
    gen_b2(a, opt)
    a('L_parta:')
    if opt.get('noa'):
        a('s_branch L_end')
    else:
        import apart
        apart.gen_a(a, opt)
```

```python
from layout import *

L_IMG = 0
L_QT = L_IMG
L_KT = 10240
L_OI = 14336
L_KX = 16384
L_W = 32768
UB = 0

SPIN = 1 << 17


def T(i, n=1):
    return 'v%d' % (16 + i) if n == 1 else 'v[%d:%d]' % (16 + i, 16 + i + n - 1)


REG_TILES = [('Q', c) for c in range(9)] + [('K', c) for c in range(10)] + [('V', c) for c in range(5, 10)] + \
            [('O', 0), ('O', 1), ('O', 2)]
LDS_TILES = [('V', c) for c in range(5)] + [('Q', 9), ('O', 3), ('O', 4)]
TILES = REG_TILES + LDS_TILES


def tile_reg(tile):
    i = REG_TILES.index(tile)
    return ('a', 16 * i) if i < 16 else ('v', 80 + 16 * (i - 16))


def slot(tile, half):
    f, b = tile_reg(tile)
    b += 8 * half
    return '%s[%d:%d]' % (f, b, b + 7)


def lds_off(tile, half):
    pos = TILES.index(tile) % 8
    return pos * 16384 + half * 2048


class VQ:
    def __init__(self, a):
        self.a, self.q = a, []

    def add(self, tag, n=1):
        self.q += [tag] * n
        assert len(self.q) <= 63, len(self.q)

    def wait(self, tag):
        last = max(i for i, t in enumerate(self.q) if t == tag)
        n = len(self.q) - 1 - last
        self.a('s_waitcnt vmcnt(%d)' % n)
        self.q = self.q[last + 1:]


sW, sGRP, sIDX, sSAFE = 's28', 's29', 's30', 's31'
sS, sMemL, sMemRin, sPubL, sPubR = 's32', 's33', 's34', 's35', 's36'
sP = ['s37', 's38', 's39', 's40', 's41']
sOwn0, sOwn1, sVx, sKxN, sVMl, sKM, sFlag, sOwner, sC, sSpin = ['s%d' % i for i in range(42, 52)]
sT0, sT1, sT2, sT3 = 's52', 's53', 's54', 's55'
sVMd, sN8 = 's56', 's[58:59]'
sLine = 's96'
sM0N = 's60'
sSig = 's61'
sVM = 's62'
sRetry = 's63'
WS, DBG = 's[4:7]', 's[8:11]'


def srd(a, d, p, nbytes):
    a('s_mov_b32 s%d, s%d' % (d, p))
    a('s_and_b32 s%d, s%d, 0xffff' % (d + 1, p + 1))
    a('s_mov_b32 s%d, 0x%x' % (d + 2, nbytes))
    a('s_mov_b32 s%d, 0x20000' % (d + 3))


def verdict(a, vreg, drain_q=None):
    ok, again = a.label('vok'), a.label('vagain')
    a('s_cmp_lg_u32 %s, 0' % sSAFE)
    a('s_cbranch_scc1 %s' % ok)
    a('s_mov_b32 %s, 0' % sSpin)
    a(again + ':')
    a('v_cmp_eq_u32 vcc, -1, %s' % vreg)
    a('s_and_b32 %s, vcc_lo, 0x5555' % sT0)
    a('s_cmp_eq_u32 %s, 0x5555' % sT0)
    a('s_cbranch_scc1 %s' % ok)
    a('s_mov_b32 %s, 0' % sT0)
    for i in range(8):
        a('v_readlane_b32 %s, %s, %d' % (sT1, vreg, 2 * i + 1))
        a('s_add_u32 %s, %s, %s' % (sT0, sT0, sT1))
    a('s_cmp_ge_u32 %s, 256' % sT0)
    a('s_cbranch_scc1 L_fallback')
    a('s_add_u32 %s, %s, 1' % (sSpin, sSpin))
    a('s_cmp_gt_u32 %s, %d' % (sSpin, SPIN))
    a('s_cbranch_scc1 L_end')
    a('v_lshlrev_b32 %s, 2, v0' % vreg)
    a('buffer_load_dword %s, %s, %s, 0 offen sc1' % (vreg, vreg, DBG))
    a('s_waitcnt vmcnt(0)')
    a('s_branch %s' % again)
    a(ok + ':')


def rho(a, dst, tmp):
    a('v_bfe_u32 %s, v0, 2, 2' % tmp)
    a('v_and_b32 %s, 1, v0' % dst)
    a('v_lshl_add_u32 %s, %s, 1, %s' % (dst, tmp, dst))


def spin_check(a):
    a('s_add_u32 %s, %s, 1' % (sSpin, sSpin))
    a('s_cmp_gt_u32 %s, %d' % (sSpin, SPIN))
    a('s_cbranch_scc1 L_end')


def gen_chain(a, opt):
    stamps = opt.get('stamps')
    a('L_chain:')
    if stamps:
        a('s_memrealtime s[84:85]')
    srd(a, 12, 76, 5242880)
    srd(a, 16, 78, 5242880)
    srd(a, 20, 80, 5242880)
    srd(a, 24, 82, 5242880)
    SRD = {'Q': 's[12:15]', 'K': 's[16:19]', 'V': 's[20:23]', 'O': 's[24:27]'}
    vWq, vWo, vT, vTo, vTid, vDb = T(40), T(42), T(44), T(46), T(48), T(49)
    t0, t1, t2 = T(50), T(51), T(52)
    T41, T43, T45, T47 = T(41), T(43), T(45), T(47)
    a('v_lshrrev_b32 %s, 5, v0' % t0)
    a('v_bfe_u32 %s, v0, 4, 1' % t1)
    a('v_lshl_add_u32 %s, %s, 3, %s' % (t0, t0, t1))
    a('v_lshlrev_b32 %s, 13, %s' % (t0, t0))
    a('s_lshl_b32 %s, %s, 8' % (sT0, sIDX))
    a('s_lshl_b32 %s, %s, 17' % (sT1, sW))
    a('s_add_u32 %s, %s, %s' % (sT0, sT0, sT1))
    a('v_lshrrev_b32 %s, 4, v0' % t1)
    a('v_and_b32 %s, 15, v0' % t2)
    for p, dst in enumerate((vWq, T41)):
        a('v_add_u32 %s, %d, %s' % (dst, 4 * p, t1))
        a('v_lshlrev_b32 %s, 1, %s' % (dst, dst))
        a('v_xor_b32 %s, %s, %s' % (dst, dst, t2))
        a('v_lshl_add_u32 %s, %s, 4, %s' % (dst, dst, t0))
        a('v_add_u32 %s, %s, %s' % (dst, sT0, dst))
    a('s_mul_i32 %s, %s, %d' % (sT0, sIDX, 128 * 1280))
    a('s_mul_i32 %s, %s, 640' % (sT1, sGRP))
    a('s_add_u32 %s, %s, %s' % (sT0, sT0, sT1))
    a('s_mul_i32 %s, %s, %d' % (sT1, sW, 32 * 1280))
    a('s_add_u32 %s, %s, %s' % (sT0, sT0, sT1))
    a('v_bfe_u32 %s, v0, 4, 1' % t0)
    a('v_lshlrev_b32 %s, 3, %s' % (t1, t0))
    a('v_lshrrev_b32 %s, 5, v0' % t2)
    a('v_lshl_add_u32 %s, %s, 1, %s' % (t1, t2, t1))
    a('v_bfe_u32 %s, v0, 3, 1' % t2)
    a('v_add_u32 %s, %s, %s' % (t1, t1, t2))
    a('v_mul_u32_u24 %s, 1280, %s' % (t1, t1))
    a('v_and_b32 %s, 7, v0' % t2)
    for p, dst in enumerate((vWo, T43)):
        a('v_add_u32 %s, %d, %s' % (dst, 2 * p, t0))
        a('v_lshlrev_b32 %s, 1, %s' % (dst, dst))
        a('v_xor_b32 %s, %s, %s' % (dst, dst, t2))
        a('v_lshl_add_u32 %s, %s, 4, %s' % (dst, dst, t1))
        a('v_add_u32 %s, %s, %s' % (dst, sT0, dst))
    a('s_mul_i32 %s, %s, %d' % (sSig, sGRP, 5 * 524288))
    a('s_lshl_b32 %s, %s, 12' % (sM0N, sW))
    a('s_add_u32 %s, %s, 0x%x' % (sM0N, sM0N, L_W))

    q = VQ(a)

    def issue(i):
        tile = TILES[i]
        k = tile[0]
        a('s_add_u32 m0, %s, %d' % (sM0N, (i % 8) * 16384))
        for j in range(4):
            if k in 'QKV':
                c = tile[1]
                lit = c * 524288 + j * (2 * 8192 - 1024)
                if c < 5:
                    a('s_add_u32 %s, %s, 0x%x' % (sT0, sSig, lit))
                else:
                    a('s_sub_u32 %s, 0x%x, %s' % (sT0, lit, sSig))
                v = (vWq, T41)[j >> 1]
            else:
                a('s_mov_b32 %s, 0x%x' % (sT0, (16 * (j >> 1) + 4 * (j & 1)) * 1280 + tile[1] * 128 - 1024 * j))
                v = (vWo, T43)[j & 1]
            a('buffer_load_dwordx4 %s, %s, %s offen offset:%d lds' % (v, SRD[k], sT0, 1024 * j))
        q.add(i, 4)

    for i in range(7):
        issue(i)
    a('v_lshrrev_b32 %s, 4, v0' % t0)
    a('v_bfe_u32 %s, v0, 2, 2' % t1)
    a('v_lshl_add_u32 %s, %s, 3, %s' % (t2, t0, t1))
    a('v_and_b32 %s, 1, %s' % (t0, t0))
    a('v_lshl_add_u32 %s, %s, 2, %s' % (T(53), t0, t1))
    a('v_lshlrev_b32 %s, 1, %s' % (T(53), T(53)))
    a('v_bfe_u32 %s, v0, 1, 1' % T(54))
    a('v_and_b32 %s, 1, v0' % T(55))
    a('v_lshlrev_b32 %s, 3, %s' % (T(55), T(55)))
    a('s_lshl_b32 %s, %s, 2' % (sT0, sW))
    for t, dst in enumerate((vT, T45)):
        a('v_add3_u32 %s, %s, %d, %s' % (dst, T(54), 2 * t, sT0))
        a('v_xor_b32 %s, %s, %s' % (dst, dst, T(53)))
        a('v_lshl_add_u32 %s, %s, 4, %s' % (dst, dst, T(55)))
        a('v_lshl_add_u32 %s, %s, 8, %s' % (dst, t2, dst))
    a('v_lshrrev_b32 %s, 1, %s' % (t1, t1))
    a('v_lshl_add_u32 %s, %s, 1, %s' % (t1, t0, t1))
    a('v_xor_b32 %s, %s, %s' % (t1, sW, t1))
    a('v_lshl_add_u32 %s, %s, 1, %s' % (t1, t1, T(54)))
    a('v_lshl_add_u32 %s, %s, 4, %s' % (t1, t1, T(55)))
    a('v_lshl_add_u32 %s, %s, 7, %s' % (vTo, t2, t1))
    FAR = {vT: T(56), T45: T(57), vTo: T(58)}
    for near, far in FAR.items():
        a('v_add_u32 %s, 0x%x, %s' % (near, L_W, near))
        a('v_add_u32 %s, 0x10000, %s' % (far, near))
    a('v_lshlrev_b32 v1, 4, v0')
    a('v_add_u32 v2, %s, v1' % sM0N)
    a('v_add_u32 v3, 0x10000, v2')
    a('s_lshl_b32 %s, %s, 10' % (sT0, sW))
    a('v_add_u32 %s, %s, v1' % (vTid, sT0))

    def trread(i, f, b):
        tile = TILES[i]
        pos = (i % 8) * 16384
        for half in range(2):
            for j, row in enumerate((0, 4, 32, 36)):
                if tile[0] == 'O':
                    v, o = vTo, pos + (row + 64 * half) * 128
                else:
                    v, o = (vT, T45)[half], pos + row * 256
                if o >= 65536:
                    v, o = FAR[v], o - 65536
                r = b + 8 * half + 2 * j
                a('ds_read_b64_tr_b16 %s[%d:%d], %s offset:%d' % (f, r, r + 1, v, o))

    NR = len(REG_TILES)
    sc_loc = lambda safe: ' sc1' if safe else ''
    for i in range(NR):
        q.wait(i)
        a('s_barrier')
        issue(i + 7)
        if i == 16:
            verdict(a, vDb)
            for r in range(4):
                a('v_mov_b32 %s, -1' % T(r))
            a('v_mov_b32 %s, 0' % T(4))
            plain, done = a.label('initp'), a.label('initd')

            def fills(safe):
                for sl in range(2):
                    a('s_lshl_b32 %s, %s, 19' % (sT0, sGRP))
                    a('s_lshl_b32 %s, %s, 13' % (sT1, sIDX))
                    a('s_add_u32 %s, %s, %s' % (sT0, sT0, sT1))
                    a('s_add_u32 %s, %s, 0x%x' % (sT1, sT0, MEML + sl * 32 * 8192))
                    a('s_add_u32 %s, %s, 0x%x' % (sT2, sT0, PART + sl * 262144))
                    for s_ in (sT1, sT2):
                        a('buffer_store_dwordx4 %s, %s, %s, %s offen%s' % (T(0, 4), vTid, WS, s_, sc_loc(safe)))
                        a('s_add_u32 %s, %s, 4096' % (s_, s_))
                        a('buffer_store_dwordx4 %s, %s, %s, %s offen%s' % (T(0, 4), vTid, WS, s_, sc_loc(safe)))
            a('s_cmp_eq_u32 %s, 0' % sSAFE)
            a('s_cbranch_scc1 %s' % plain)
            fills(True)
            a('s_branch %s' % done)
            a(plain + ':')
            fills(False)
            a(done + ':')
            for sl in range(2):
                a('s_lshl_b32 %s, %s, 20' % (sT0, sGRP))
                a('s_lshl_b32 %s, %s, 14' % (sT1, sIDX))
                a('s_add_u32 %s, %s, %s' % (sT0, sT0, sT1))
                a('s_add_u32 %s, %s, 0x%x' % (sT0, sT0, MEMR + sl * 32 * 16384))
                for j in range(4):
                    a('buffer_store_dwordx4 %s, %s, %s, %s offen sc1' % (T(0, 4), vTid, WS, sT0))
                    if j < 3:
                        a('s_add_u32 %s, %s, 4096' % (sT0, sT0))
            a('s_lshl_b32 %s, %s, 5' % (sT0, sGRP))
            a('s_add_u32 %s, %s, %s' % (sT0, sT0, sIDX))
            a('s_lshl_b32 %s, %s, 7' % (sT1, sT0))
            a('s_add_u32 %s, %s, 0x%x' % (sT1, sT1, FLG))
            a('buffer_store_dword %s, off, %s, %s sc1' % (T(4), WS, sT1))
            a('s_lshl_b32 %s, %s, 8' % (sT1, sT0))
            a('s_add_u32 %s, %s, 0x%x' % (sT1, sT1, FLG2))
            a('v_lshlrev_b32 %s, 2, v0' % t0)
            a('buffer_store_dword %s, %s, %s, %s offen sc1' % (T(4), t0, WS, sT1))
            q.add('init', 18)
        if i == 25:
            assert 'init' not in q.q
            other, done = a.label('arr'), a.label('arrd')
            a('s_cmp_lg_u32 %s, 0' % sW)
            a('s_cbranch_scc1 %s' % other)
            a('s_mov_b64 exec, 1')
            a('v_mov_b32 %s, 1' % T(59))
            a('buffer_atomic_add %s, off, %s, 0 offset:%d sc1' % (T(59), DBG, D_INIT * 4))
            a('s_mov_b64 exec, -1')
            a('s_branch %s' % done)
            a(other + ':')
            a('buffer_load_dword %s, off, %s, 0 offset:%d sc1' % (T(59), DBG, D_INIT * 4))
            a(done + ':')
            q.add('arr')
        f, b = tile_reg(TILES[i])
        trread(i, f, b)
        a('s_waitcnt lgkmcnt(0)')
        if i == 9:
            a('v_lshlrev_b32 %s, 2, v0' % vDb)
            a('buffer_load_dword %s, %s, %s, 0 offen sc1' % (vDb, vDb, DBG))
            q.add('ver')
            q.q[-1] = 16
    srd(a, 12, 74, 10240)
    a('v_bfe_u32 %s, v0, 3, 1' % t0)
    a('v_and_b32 %s, 2, v0' % t1)
    a('v_lshl_add_u32 %s, %s, 2, %s' % (t0, t0, t1))
    a('v_bfe_u32 %s, v0, 2, 1' % t1)
    a('v_add_u32 %s, %s, %s' % (t0, t0, t1))
    a('v_mul_u32_u24 %s, 1280, %s' % (t0, t0))
    a('v_lshrrev_b32 %s, 4, v0' % t1)
    a('v_lshl_add_u32 %s, %s, 5, %s' % (t0, t1, t0))
    a('v_and_b32 %s, 1, v0' % t1)
    a('v_lshl_add_u32 %s, %s, 4, %s' % (t0, t1, t0))
    for j in range(3):
        skip = a.label('m0s')
        a('s_add_u32 %s, %s, %d' % (sT0, sW, 4 * j))
        if j == 2:
            a('s_and_b32 %s, %s, 9' % (sT0, sT0))
        a('s_lshl_b32 %s, %s, 10' % (sT1, sT0))
        a('s_add_u32 m0, %s, 0x%x' % (sT1, L_IMG))
        a('s_mul_i32 %s, %s, 5' % (sT1, sGRP))
        a('s_add_u32 %s, %s, %s' % (sT0, sT0, sT1))
        a('s_sub_u32 %s, %s, 10' % (sT1, sT0))
        a('s_cmp_ge_u32 %s, 10' % sT0)
        a('s_cselect_b32 %s, %s, %s' % (sT0, sT1, sT0))
        a('s_lshl_b32 %s, %s, 7' % (sT0, sT0))
        a('buffer_load_dwordx4 %s, s[12:15], %s offen lds' % (t0, sT0))
        q.add('mem0')
    for i in range(NR, len(TILES)):
        q.wait(i)
        a('s_barrier')
        if i == NR:
            issue(len(TILES) - 1)
        trread(i, 'v', 16)
        a('s_waitcnt lgkmcnt(0)')
        a('s_barrier')
        for j in range(4):
            o = (i % 8) * 16384 + j * 1024
            a('ds_write_b128 %s, %s offset:%d' % ('v2' if o < 65536 else 'v3', T(4 * j, 4), o & 65535))
    g, n = T(0), T(1)
    a('v_lshrrev_b32 %s, 4, v0' % g)
    a('v_and_b32 %s, 15, v0' % n)
    a('v_mov_b32 v4, 0x4444')
    a('v_mov_b32 %s, 0xeeee' % t0)
    a('v_and_b32 %s, 2, v0' % t1)
    a('v_cmp_ne_u32 vcc, 0, %s' % t1)
    a('v_cndmask_b32 v4, v4, %s, vcc' % t0)
    rh, gl, gh = T(2), T(3), T(4)
    rho(a, rh, t0)
    a('v_and_b32 %s, 1, %s' % (gl, g))
    a('v_lshrrev_b32 %s, 1, %s' % (gh, g))
    a('s_lshl_b32 %s, %s, 10' % (sT0, sW))
    a('s_add_u32 %s, %s, 0x%x' % (sT0, sT0, UB))
    a('v_lshlrev_b32 %s, 5, %s' % (t0, n))
    a('v_lshl_add_u32 v5, %s, 3, %s' % (g, t0))
    a('v_add_u32 v5, %s, v5' % sT0)
    a('v_bfe_u32 %s, v0, 2, 2' % t1)
    a('v_lshl_add_u32 %s, %s, 2, %s' % (t1, gl, t1))
    a('v_lshl_add_u32 %s, %s, 4, %s' % (t1, gh, t1))
    a('v_and_b32 %s, 3, v0' % t2)
    a('v_lshlrev_b32 %s, 3, %s' % (t2, t2))
    a('v_lshl_add_u32 v6, %s, 5, %s' % (t1, t2))
    a('v_add_u32 v6, 0x%x, v6' % UB)
    a('s_lshl_b32 %s, %s, 9' % (sT0, sW))
    a('s_add_u32 %s, %s, 0x%x' % (sT0, sT0, L_OI))
    a('v_and_b32 %s, 13, v0' % t1)
    a('v_lshl_add_u32 %s, %s, 1, %s' % (t1, gh, t1))
    a('v_and_b32 %s, 2, v0' % t2)
    a('v_lshl_add_u32 %s, %s, 3, %s' % (t1, t2, t1))
    a('v_lshlrev_b32 %s, 4, %s' % (t1, t1))
    a('v_lshl_add_u32 v7, %s, 3, %s' % (gl, t1))
    a('v_add_u32 v7, %s, v7' % sT0)
    a('s_lshl_b32 %s, %s, 8' % (sT0, sIDX))
    a('s_lshl_b32 %s, %s, 13' % (sT1, sW))
    a('s_add_u32 %s, %s, %s' % (sT0, sT0, sT1))
    a('v_lshl_add_u32 v8, v0, 2, %s' % sT0)
    a('s_and_b32 %s, %s, 1' % (sT0, sW))
    a('s_lshr_b32 %s, %s, 1' % (sT1, sW))
    a('s_mul_i32 %s, %s, 5120' % (sT1, sT1))
    a('s_mul_i32 %s, %s, 1536' % (sT2, sT0))
    a('s_sub_u32 %s, 4096, %s' % (sT2, sT2))
    a('v_lshl_add_u32 v9, v0, 3, %s' % sT2)
    a('s_lshl_b32 %s, %s, 9' % (sVM, sW))
    a('s_sub_u32 %s, %s, %s' % (sVMd, sVM, sT2))
    a('s_lshr_b32 %s, %s, 1' % (sVM, sW))
    a('s_lshl_b32 %s, %s, 10' % (sVM, sVM))
    a('s_add_u32 %s, %s, %s' % (sVMl, sVMd, sVM))
    a('s_add_u32 %s, %s, 0x%x' % (sVMl, sVMl, L_KT))
    a('s_lshl_b32 %s, %s, 11' % (sT2, sT0))
    a('s_add_u32 %s, %s, %s' % (sT2, sT2, sT1))
    a('v_add_u32 v10, %s, v1' % sT2)
    a('s_lshl_b32 %s, %s, 9' % (sT2, sT0))
    a('s_add_u32 %s, %s, %s' % (sT2, sT2, sT1))
    a('s_add_u32 %s, %s, 0x%x' % (sT2, sT2, L_IMG + 4096))
    a('v_lshl_add_u32 v11, v0, 3, %s' % sT2)
    a('s_mov_b32 %s, 0' % sS)
    a('s_lshl_b32 %s, %s, 11' % (sT2, sT0))
    a('s_lshl_b32 %s, %s, 19' % (sT1, sGRP))
    a('s_add_u32 %s, %s, 0x%x' % (sPubL, sT1, MEML + 8192))
    a('s_add_u32 %s, %s, %s' % (sMemL, sT1, sT2))
    a('s_add_u32 %s, %s, 0x%x' % (sMemL, sMemL, MEML))
    for t in range(5):
        a('s_add_u32 %s, %s, 0x%x' % (sP[t], sT1, PART + t * 32768))
    a('s_add_u32 %s, %s, 0x%x' % (sOwn0, sT1, PART))
    a('s_add_u32 %s, %s, 0x%x' % (sOwn1, sT1, PART + 4096))
    a('s_lshl_b32 %s, %s, 20' % (sT1, sGRP))
    a('s_add_u32 %s, %s, 0x%x' % (sPubR, sT1, MEMR + 16384))
    a('s_xor_b32 %s, %s, 0x100000' % (sT1, sT1))
    a('s_add_u32 %s, %s, %s' % (sMemRin, sT1, sT2))
    a('s_add_u32 %s, %s, 0x%x' % (sMemRin, sMemRin, MEMR))
    a('s_lshl_b32 %s, %s, 14' % (sT1, sIDX))
    a('s_lshl_b32 %s, %s, 12' % (sT2, sW))
    a('s_add_u32 %s, %s, %s' % (sKxN, sT1, sT2))
    a('s_add_u32 %s, %s, 0x%x' % (sKxN, sKxN, KV))
    a('s_lshl_b32 %s, %s, 11' % (sVx, sW))
    a('s_add_u32 %s, %s, 0x%x' % (sVx, sVx, L_KX + 8192))
    a('s_lshl_b32 %s, %s, 12' % (sKM, sIDX))
    a('s_add_u32 %s, %s, 0x%x' % (sKM, sKM, KMVM))
    a('s_lshl_b32 %s, %s, 11' % (sT1, sGRP))
    a('s_lshl_b32 %s, %s, 10' % (sT2, sW))
    a('s_add_u32 %s, %s, %s' % (sT1, sT1, sT2))
    a('s_add_u32 %s, %s, %s' % (sVM, sKM, sT1))
    a('s_sub_u32 %s, %s, 0x%x' % (sVM, sVM, 0x20000 + 2048))
    a('s_and_b32 %s, %s, 7' % (sT1, sIDX))
    a('s_add_u32 %s, %s, 32' % (sT1, sT1))
    a('s_add_u32 %s, %s, 1' % (sT2, sW))
    a('s_and_b32 %s, %s, 2' % (sT2, sT2))
    a('s_cmp_eq_u32 %s, 0' % sT2)
    a('s_cselect_b32 %s, %s, %s' % (sT1, sIDX, sT1))
    a('s_lshl_b32 %s, %s, 7' % (sLine, sT1))
    a('s_and_b32 %s, %s, 1' % (sT2, sW))
    a('s_lshl_b32 %s, %s, 11' % (sT2, sT2))
    a('s_sub_u32 %s, %s, %s' % (sLine, sLine, sT2))
    a('s_lshl_b32 %s, %s, 5' % (sT1, sGRP))
    a('s_add_u32 %s, %s, %s' % (sT1, sT1, sIDX))
    a('s_lshl_b32 %s, %s, 7' % (sT1, sT1))
    a('s_add_u32 %s, %s, 0x%x' % (sFlag, sT1, FLG))
    import struct
    import math
    cbits = struct.unpack('<I', struct.pack('<f', 128 ** -0.5 * math.log2(math.e)))[0]
    a('s_mov_b32 %s, 0x%x' % (sC, cbits))
    a('s_mov_b32 s58, 0x33333333')
    a('s_mov_b32 s59, 0x33333333')
    a('s_mov_b32 %s, 0' % sRetry)
    isG, join = a.label('cG'), a.label('cJ')
    a('s_cmp_lt_u32 %s, 2' % sW)
    a('s_cbranch_scc1 %s' % isG)
    a('s_add_u32 %s, %s, 32' % (sT1, sIDX))
    a('s_cmp_eq_u32 %s, 3' % sW)
    a('s_cselect_b32 %s, %s, %s' % (sT1, sIDX, sT1))
    a('s_cmp_lt_u32 %s, 40' % sT1)
    a('s_cselect_b32 %s, 1, 0' % sOwner)
    a('s_cselect_b32 %s, %s, 0' % (sT1, sT1))
    a('s_and_b32 %s, %s, 1' % (sT2, sT1))
    a('s_lshr_b32 %s, %s, 1' % (sT1, sT1))
    a('s_lshl_b32 %s, %s, 13' % (sT3, sT1))
    a('s_lshl_b32 %s, %s, 7' % (sT0, sT2))
    a('s_add_u32 %s, %s, %s' % (sT3, sT3, sT0))
    a('v_bfe_u32 %s, v0, 3, 1' % t1)
    a('v_lshl_add_u32 %s, %s, 2, %s' % (t1, t1, g))
    a('v_lshlrev_b32 %s, 8, %s' % (t1, t1))
    a('v_and_b32 %s, 7, v0' % t2)
    a('v_lshl_add_u32 v12, %s, 4, %s' % (t2, t1))
    a('v_add_u32 v12, %s, v12' % sT3)
    a('s_lshl_b32 %s, %s, 8' % (sT3, sT1))
    a('s_add_u32 %s, %s, %s' % (sT3, sT3, sT0))
    a('v_lshlrev_b32 %s, 3, %s' % (t2, t2))
    a('v_lshl_add_u32 v13, %s, 6, %s' % (gl, t2))
    a('v_add_u32 v13, %s, v13' % sT3)
    a('s_branch %s' % join)
    a(isG + ':')
    a('s_mov_b32 %s, 0' % sOwner)
    a('v_lshl_add_u32 %s, %s, 3, %s' % (t2, g, rh))
    a('v_lshlrev_b32 v12, 4, %s' % t2)
    a('s_lshl_b32 %s, %s, 10' % (sT1, sW))
    a('v_add_u32 v12, %s, v12' % sT1)
    a('v_lshlrev_b32 v13, 7, v0')
    a(join + ':')
    a('v_and_b32 %s, 8, v0' % t1)
    a('v_and_b32 %s, 1, v0' % t2)
    a('v_lshl_add_u32 %s, %s, 2, %s' % (t1, t2, t1))
    a('v_bfe_u32 %s, v0, 1, 2' % t2)
    a('v_add_u32 %s, %s, %s' % (t1, t1, t2))
    a('v_lshl_add_u32 %s, %s, 4, %s' % (t1, g, t1))
    a('v_lshlrev_b32 v15, 4, %s' % t1)
    a('v_add_u32 v15, 0x%x, v15' % UB)
    again = a.label('start')
    a('s_mov_b32 %s, 0' % sSpin)
    if stamps:
        a('s_memrealtime s[98:99]')
    a(again + ':')
    a('v_lshlrev_b32 %s, 2, v0' % t0)
    a('buffer_load_dword %s, %s, %s, 0 offen sc1' % (t0, t0, DBG))
    spin_check(a)
    a('s_waitcnt vmcnt(0)')
    a('v_readlane_b32 %s, %s, %d' % (sT0, t0, D_INIT))
    a('v_readlane_b32 %s, %s, %d' % (sT1, t0, D_CAL))
    a('s_cmp_lg_u32 %s, 64' % sT0)
    a('s_cbranch_scc1 %s' % again)
    a('s_cmp_eq_u32 %s, 0' % sT1)
    a('s_cbranch_scc1 %s' % again)
    if not opt.get('chain_only'):
        for rb in range(6):
            a('v_readlane_b32 %s, %s, %d' % (sT2, t0, D_KV + rb))
            a('s_cmp_lg_u32 %s, 32' % sT2)
            a('s_cbranch_scc1 %s' % again)
    a('s_and_b32 %s, %s, 1' % (sT1, sT1))
    if 'forcecal' in opt:
        a('s_mov_b32 %s, %d' % (sT1, opt['forcecal'] & 1))
    if opt.get('flipcal'):
        a('s_xor_b32 %s, %s, 1' % (sT1, sT1))
    a('s_lshl_b32 %s, %s, 13' % (sT1, sT1))
    a('s_add_u32 %s, %s, %s' % (sPubR, sPubR, sT1))
    a('s_add_u32 %s, %s, %s' % (sMemRin, sMemRin, sT1))
    if stamps:
        a('s_memtime s[92:93]')
        a('s_memrealtime s[100:101]')
    lab = {}
    for safe in (False, True):
        for role in 'GO':
            lab[role, safe] = a.label('loop%s%d' % (role, safe))
    sf = a.label('safe')
    a('s_cmp_lg_u32 %s, 0' % sSAFE)
    a('s_cbranch_scc1 %s' % sf)
    a('s_cmp_ge_u32 %s, 2' % sW)
    a('s_cbranch_scc1 %s' % (lab['O', False] + '_pre'))
    a('s_branch %s' % (lab['G', False] + '_pre'))
    a(sf + ':')
    a('s_cmp_ge_u32 %s, 2' % sW)
    a('s_cbranch_scc1 %s' % (lab['O', True] + '_pre'))
    a('s_branch %s' % (lab['G', True] + '_pre'))
    fin = a.label('chainfin')
    for safe in (False, True):
        for role in 'GO':
            step_loop(a, role, safe, lab[role, safe], fin, opt)
    a(fin + ':')
    nov, done = a.label('finv'), a.label('find')
    a('s_cmp_eq_u32 %s, 0' % sGRP)
    a('s_cbranch_scc1 %s' % nov)
    a('s_add_u32 %s, %s, %s' % (sT0, sKM, sVMd))
    a('buffer_store_dwordx2 v[14:15], v9, %s, %s offen offset:2048 sc1' % (WS, sT0))
    a('s_branch %s' % done)
    a(nov + ':')
    a('s_cmp_ge_u32 %s, 2' % sW)
    a('s_cbranch_scc1 %s' % done)
    a('s_cmp_eq_u32 %s, 1' % sW)
    a('s_cbranch_scc1 %s' % (nov + 'b'))
    a('buffer_store_dwordx4 %s, v12, %s, %s offen sc1' % (T(KMREG[0], 4), WS, sKM))
    a('buffer_store_dwordx4 %s, v12, %s, %s offen offset:512 sc1' % (T(KMREG[1], 4), WS, sKM))
    a('s_branch %s' % done)
    a(nov + 'b:')
    a('buffer_store_dwordx4 %s, v12, %s, %s offen sc1' % (T(KMREG[2], 4), WS, sKM))
    a('buffer_store_dwordx4 %s, v12, %s, %s offen offset:512 sc1' % (T(KMREG[3], 4), WS, sKM))
    a(done + ':')
    a('s_waitcnt vmcnt(0)')
    a('s_barrier')
    a('s_cmp_lg_u32 %s, 0' % sW)
    a('s_cbranch_scc1 L_end')
    a('v_mov_b32 v14, 64')
    a('buffer_store_dword v14, off, %s, %s sc1' % (WS, sFlag))
    if stamps:
        a('s_memtime s[94:95]')
        a('s_memrealtime s[86:87]')
        a('s_waitcnt lgkmcnt(0)')
        a('s_sub_u32 s94, s94, s92')
        a('s_sub_u32 s86, s86, s100')
        a('v_mov_b32 v16, s94')
        a('v_mov_b32 v17, s86')
        a('v_mov_b32 v18, s100')
        a('v_mov_b32 v19, s98')
        a('s_lshl_b32 %s, %s, 5' % (sT0, sGRP))
        a('s_add_u32 %s, %s, %s' % (sT0, sT0, sIDX))
        a('s_lshl_b32 %s, %s, 4' % (sT0, sT0))
        a('s_add_u32 %s, %s, 0x%x' % (sT0, sT0, STAMP))
        a('v_mov_b32 v20, s84')
        a('buffer_store_dwordx4 v[16:19], off, %s, %s' % (WS, sT0))
        a('buffer_store_dword v20, off, %s, %s offset:1024' % (WS, sT0))
    a('s_branch L_end')


AREG = [40, 44, 48, 40, 44, 48, 52, 56, 40, 44]
KMREG = [0, 4, 48, 52]


def kv_dma(a):
    a('s_lshl_b32 %s, %s, 12' % (sT0, sW))
    a('s_add_u32 m0, %s, 0x%x' % (sT0, L_KX))
    a('s_nop 0')
    for j in range(4):
        a('buffer_load_dwordx4 v1, %s, %s offen offset:%d sc1 lds' % (WS, sKxN, 1024 * j))
    a('s_add_u32 %s, %s, 0x80000' % (sKxN, sKxN))


def backoff(a, cycles):
    n = cycles // 4
    while n >= 16:
        a('s_sleep 1')
        n -= 16
    if n > 0:
        a('s_nop %d' % (n - 1))


def g_loads(a, r, soff):
    a('buffer_load_dwordx4 %s, v1, %s, %s offen sc1' % (T(r, 4), WS, soff))
    a('buffer_load_dwordx4 %s, v1, %s, %s offen offset:1024 sc1' % (T(r + 4, 4), WS, soff))
    a('buffer_load_dwordx2 %s, v9, %s, %s offen sc1' % (T(r + 8, 2), WS, soff))


def g_writes(r, o=0):
    return ['ds_write_b128 v10, %s offset:%d' % (T(r, 4), o), 'ds_write_b128 v10, %s offset:%d' % (T(r + 4, 4), o + 1024),
            'ds_write_b64 v11, %s offset:%d' % (T(r + 8, 2), o)]


def g_check(r):
    return ['v_max3_u32 v14, %s, %s, %s' % (T(r), T(r + 1), T(r + 2)),
            'v_max3_u32 v14, v14, %s, %s' % (T(r + 3), T(r + 4)),
            'v_max3_u32 v14, v14, %s, %s' % (T(r + 5), T(r + 6)),
            'v_max3_u32 v14, v14, %s, %s' % (T(r + 7), T(r + 8)),
            'v_max_u32 v14, v14, %s' % T(r + 9),
            'v_cmp_eq_u32 vcc, -1, v14']


def pack_ops(r, twice=False):
    ops = ['v_add_f32 %s, %s, %s' % (T(r + 2), T(r), T(r + 2)),
           'v_add_f32 %s, %s, %s' % (T(r + 3), T(r + 1), T(r + 3)),
           'v_cvt_pk_bf16_f32 %s, %s, %s' % (T(r), T(r + 2), T(r + 3))]
    if twice:
        ops.append('v_cvt_pk_bf16_f32 %s, %s, %s' % (T(r + 1), T(r + 2), T(r + 3)))
    return ops


def step_loop(a, role, safe, head, fin, opt):
    G = role == 'G'
    loc = ' sc1' if safe else ''
    st = opt.get('phase_stamps')
    sm = lambda acc, A, B: 'v_smfmac_f32_16x16x64_bf16 %s, %s, %s, v4' % (T(acc, 4), T(A, 4), B)
    mf = lambda D, A, B, C: 'v_mfma_f32_16x16x32_bf16 %s, %s, %s, %s' % (T(D, 4), T(A, 4), T(B, 4), C)
    B0, B1 = T(24, 8), T(32, 8)
    lq = []
    vA = 'v0' if G else 'v10'

    def stamp(i):
        if st:
            a('%s s[%d:%d]' % ('s_memrealtime' if opt.get('rt') else 's_memtime', 64 + 2 * i, 65 + 2 * i))

    def retry():
        if st:
            a('s_add_u32 %s, %s, 1' % (sRetry, sRetry))
        spin_check(a)

    def ds(text, tag):
        a(text)
        lq.append(tag)

    def lwait(tag):
        if tag not in lq:
            return
        last = max(i for i, t in enumerate(lq) if t == tag)
        a('s_waitcnt lgkmcnt(%d)' % min(len(lq) - 1 - last, 15))
        del lq[:last + 1]

    def ldslot(dst, tile, half, tag='x'):
        o = lds_off(tile, half)
        ds('ds_read_b128 %s, %s offset:%d' % (T(dst, 4), 'v3' if o >> 16 else 'v2', o & 65535), tag)
        ds('ds_read_b128 %s, %s offset:%d' % (T(dst + 4, 4), 'v3' if o >> 16 else 'v2', (o & 65535) + 1024), tag)

    def img(dst, c):
        ds('ds_read_b128 %s, %s offset:%d' % (T(dst, 4), vA, L_IMG - UB + c * 1024), 'A%d' % c)

    def trpair(dst, base, ks, tag):
        ds('ds_read_b64_tr_b16 %s, v6 offset:%d' % (T(dst, 2), base - UB + ks * 1024), tag)
        ds('ds_read_b64_tr_b16 %s, v6 offset:%d' % (T(dst + 2, 2), base - UB + ks * 1024 + 256), tag)

    def zero(lo, hi):
        for r in range(lo, hi, 2):
            a('v_mov_b64 %s, 0' % T(r, 2))

    def barrier():
        a('s_waitcnt lgkmcnt(0)')
        a('s_barrier')
        del lq[:]

    a(head + '_pre:')
    a('v_mov_b32 %s, v15' % vA)
    if G:
        kv_dma(a)
        a('s_waitcnt vmcnt(0)')
    a('.p2align 3')
    a(head + ':')
    ldslot(24, ('V', 0), 0)
    ldslot(32, ('V', 0), 1)
    zero(0, 24)
    stamp(0)
    b1 = a.label('b1')
    if G:
        a('s_cmp_eq_u32 %s, 0' % sS)
        a('s_cbranch_scc1 %s' % b1)
        a('s_mov_b32 %s, 0' % sSpin)
        a('s_waitcnt lgkmcnt(0)')
        a('s_barrier')
        backoff(a, opt.get('gdelay', 220))
        okA, okB, again = a.label('gA'), a.label('gB'), a.label('gag')
        g_loads(a, 52, sMemL)
        backoff(a, opt.get('gspace', 60))
        g_loads(a, 40, sMemL)
        a(again + ':')
        a('s_waitcnt vmcnt(3)')
        for x in g_check(52):
            a(x)
        a('s_cbranch_vccz %s' % okA)
        g_loads(a, 52, sMemL)
        if st:
            a('s_add_u32 %s, %s, 1' % (sRetry, sRetry))
        a('s_waitcnt vmcnt(3)')
        for x in g_check(40):
            a(x)
        a('s_cbranch_vccz %s' % okB)
        g_loads(a, 40, sMemL)
        retry()
        a('s_branch %s' % again)
        a(okB + ':')
        for x in g_writes(40):
            a(x)
        backoff(a, opt.get('rdelay', 0))
        g_loads(a, 52, sMemRin)
        a('s_branch %s' % b1)
        a(okA + ':')
        for x in g_writes(52):
            a(x)
        backoff(a, opt.get('rdelay', 0))
        g_loads(a, 52, sMemRin)
        a('s_waitcnt vmcnt(3)')
        a(b1 + ':')
        a('s_waitcnt lgkmcnt(0)')
    else:
        a('s_lshl_b32 %s, %s, 11' % (sT1, sW))
        a('v_add_u32 %s, %s, v1' % (T(56), sT1))
        a('s_waitcnt lgkmcnt(0)')
    a('s_barrier')
    del lq[:]
    stamp(1)
    img(40, 0)
    img(44, 1)
    img(48, 2)
    if not G:
        kv_dma(a)
    RC = opt.get('remc', 3)
    Areg = AREG
    for c in range(5):
        A = Areg[c]
        nxt = ('V', c + 1) if c < 4 else ('Q', 9)
        rem = G and c == RC
        wr, ck = g_writes(52, 5120), g_check(52)
        lwait('A%d' % c)
        lwait('B0')
        a(sm(16, A, B0))
        ldslot(24, nxt, 0, 'B0n')
        a(sm(0, A, slot(('Q', c), 0)))
        if not G and c == 0:
            ds('ds_read_b128 %s, %s offset:%d' % (T(52, 4), T(56), L_KT - UB - 4096), 'vs')
        if not G and c == 2:
            lwait('vs')
            a('buffer_store_dwordx4 %s, v1, %s, %s offen sc1' % (T(52, 4), WS, sVM))
        if rem:
            norem = a.label('norem')
            a('s_cmp_eq_u32 %s, 0' % sS)
            a('s_cbranch_scc1 %s' % norem)
            a('s_waitcnt vmcnt(0)')
            ds(wr[0], 'w')
            a(ck[0])
        a(sm(4, A, slot(('Q', c), 1)))
        if rem:
            ds(wr[1], 'w')
            a(ck[1])
        lwait('B1')
        a(sm(20, A, B1))
        ldslot(32, nxt, 1, 'B1n')
        a(sm(8, A, slot(('K', c), 0)))
        if rem:
            ds(wr[2], 'w')
            a(ck[2])
        a(sm(12, A, slot(('K', c), 1)))
        if rem:
            ok, again = a.label('rok'), a.label('rag')
            for x in ck[3:]:
                a(x)
            a('s_cbranch_vccz %s' % ok)
            a('s_mov_b32 %s, 0' % sSpin)
            a('s_add_u32 %s, %s, %s' % (sT0, sMemRin, sLine))
            watch = a.label('watch')
            a(watch + ':')
            a('buffer_load_dword v14, off, %s, %s sc1' % (WS, sT0))
            spin_check(a)
            a('s_waitcnt vmcnt(0)')
            a('v_cmp_eq_u32 vcc, -1, v14')
            a('s_cbranch_vccnz %s' % watch)
            a(again + ':')
            backoff(a, opt.get('rspace', 60))
            g_loads(a, 52, sMemRin)
            if st:
                a('s_add_u32 %s, %s, 0x10000' % (sRetry, sRetry))
            spin_check(a)
            a('s_waitcnt vmcnt(0)')
            for x in ck:
                a(x)
            a('s_cbranch_vccnz %s' % again)
            for x in wr:
                a(x)
            a('s_waitcnt lgkmcnt(0)')
            a('s_branch %s' % ok)
            a(norem + ':')
            a(sm(4, A, slot(('Q', c), 1)))
            a('s_waitcnt lgkmcnt(0)')
            a(sm(20, A, B1))
            o = lds_off(nxt, 1)
            a('ds_read_b128 %s, %s offset:%d' % (T(32, 4), 'v3' if o >> 16 else 'v2', o & 65535))
            a('ds_read_b128 %s, %s offset:%d' % (T(36, 4), 'v3' if o >> 16 else 'v2', (o & 65535) + 1024))
            a(sm(8, A, slot(('K', c), 0)))
            a(sm(12, A, slot(('K', c), 1)))
            a('s_waitcnt lgkmcnt(0)')
            a(ok + ':')
        if c < 2:
            img(Areg[c + 3], c + 3)
        lq[:] = [{'B0n': 'B0', 'B1n': 'B1'}.get(t, t) for t in lq]
        if c == 3:
            stamp(2)
            barrier()
            stamp(3)
            for cc in (5, 6, 7, 8):
                img(Areg[cc], cc)
        if c == 4:
            img(Areg[9], 9)
            if G:
                a('s_lshl_b32 %s, %s, 9' % (sT0, sW))
                a('s_add_u32 m0, %s, 0x%x' % (sT0, L_IMG + 4096))
                a('s_lshl_b32 %s, %s, 12' % (sT1, sW))
                a('s_add_u32 %s, %s, %s' % (sT1, sT1, sKxN))
                a('s_add_u32 %s, %s, 8192' % (sT0, sMemL))
                a('buffer_load_dword v13, %s, %s offen sc1 lds' % (WS, sT1))
                a('buffer_load_dword v13, %s, %s offen sc1 lds' % (WS, sT0))
                nf = a.label('nf')
                a('s_cmp_lg_u32 %s, 0' % sW)
                a('s_cbranch_scc1 %s' % nf)
                a('s_sub_u32 %s, %s, 1' % (sT0, sS))
                a('s_max_i32 %s, %s, 0' % (sT0, sT0))
                a('v_mov_b32 v14, %s' % sT0)
                a('buffer_store_dword v14, off, %s, %s sc1' % (WS, sFlag))
                a(nf + ':')
    kxo = lambda kt, ks: L_KX - UB + kt * 4096 + ks * 1024
    order = [(0, 0), (1, 0), (0, 1), (1, 1), (0, 2), (1, 2), (0, 3), (1, 3)]
    xreg = [60, 0, 4, Areg[5], Areg[6], Areg[7], Areg[8], Areg[9]]

    def xread(i):
        ds('ds_read_b128 %s, v1 offset:%d' % (T(xreg[i], 4), kxo(*order[i])), 'X%d' % i)
    seq = [(m, t, c) for m in 'QK' for t in range(2) for c in range(5, 10)] + \
          [('V', t, c) for c in range(5, 10) for t in range(2)]
    acc = {'Q': 0, 'K': 8, 'V': 16}
    gap = {i: [] for i in range(30)}
    for j, (r, off) in enumerate(((0, L_QT), (4, L_QT + 512), (8, L_KT))):
        ops = pack_ops(r, True)
        for k in range(4):
            gap[5 * j + 6 + k].append(ops[k])
        gap[5 * j + 10].insert(0, ('w', 'ds_write_b64 v5, %s offset:%d' % (T(r, 2), off - UB)))
    gap[21] += pack_ops(12, True)
    gap[22].insert(0, ('w', 'ds_write_b64 v5, %s offset:%d' % (T(12, 2), L_KT + 512 - UB)))
    gap[22].append('v_add_u32 %s, %s, v1' % ('v14', sVx))
    for i, (m, t, c) in enumerate(seq):
        if i < 5:
            lwait('A%d' % c)
        if m == 'Q' and c == 9:
            lwait('B%d' % t)
        a(sm(acc[m] + 4 * t, Areg[c], (B0, B1)[t] if (m, c) == ('Q', 9) else slot((m, c), t)))
        if i in (5, 12, 17):
            xread((5, 12, 17).index(i))
        for x in gap[i]:
            if isinstance(x, tuple):
                ds(x[1], x[0])
            else:
                a(x)
        if i == 19:
            stamp(4)
        if i == 23:
            xread(3)
            xread(4)
        if i == 24:
            a('s_waitcnt lgkmcnt(2)' if G else 's_waitcnt vmcnt(1) lgkmcnt(2)')
            a('s_barrier')
            lq[:] = ['X3', 'X4']
            trpair(24, L_QT, 0, 'q0')
        if i == 25:
            trpair(28, L_QT, 1, 'q1')
            xread(5)
        if i == 26:
            trpair(32, L_QT, 2, 'q2')
        if i == 27:
            xread(6)
            trpair(36, L_QT, 3, 'q3')
        if i == 29:
            xread(7)
    kmreg = [0, 4, Areg[5], Areg[6]]
    vp = ['v_add_f32 %s, %s, %s' % (T(18), T(16), T(18)), 'v_add_f32 %s, %s, %s' % (T(19), T(17), T(19)),
          'v_add_f32 %s, %s, %s' % (T(22), T(20), T(22)), 'v_add_f32 %s, %s, %s' % (T(23), T(21), T(23))]
    for i, (kt, ks) in enumerate(order):
        lwait('q%d' % ks)
        lwait('X%d' % i)
        D = 8 + 4 * kt
        a(mf(D, xreg[i], 24 + 4 * ks, '0' if ks == 0 else T(D, 4)))
        if 1 <= i <= 4:
            trpair(kmreg[i - 1], L_KT, i - 1, 'M%d' % (i - 1))
            a(vp[i - 1])
        if i == 5:
            ds('ds_read_b128 %s, v14' % T(Areg[7], 4), 'vx')
        if i == 6:
            ds('ds_read_b128 %s, v14 offset:1024' % T(Areg[8], 4), 'vx')
            a('v_cvt_pk_bf16_f32 v15, %s, %s' % (T(22), T(23)))
        if i == 7:
            a('v_cvt_pk_bf16_f32 v14, %s, %s' % (T(18), T(19)))
            a('v_mov_b32 %s, 0x3f803f80' % T(20))
    VX0, VX1 = Areg[7], Areg[8]
    fill = ['v_mov_b32 %s, 0x3f803f80' % T(21),
            'v_max3_f32 %s, %s, %s, %s' % (T(16), T(8), T(9), T(10)),
            'v_max3_f32 %s, %s, %s, %s' % (T(16), T(16), T(11), T(12)),
            'v_max3_f32 %s, %s, %s, %s' % (T(16), T(16), T(13), T(14)),
            'v_max_f32 %s, %s, %s' % (T(16), T(16), T(15)),
            'v_mov_b32 %s, 0x3f803f80' % T(22), 'v_mov_b32 %s, 0x3f803f80' % T(23)]
    for ks in range(4):
        lwait('M%d' % ks)
        a(mf(60, kmreg[ks], 24 + 4 * ks, '0' if ks == 0 else T(60, 4)))
        if ks < 3:
            a(fill[2 * ks])
            a(fill[2 * ks + 1])
    ldslot(24, ('O', 3), 0, 'bo')
    ldslot(32, ('O', 3), 1, 'bo')
    a('s_cmp_eq_u32 %s, 63' % sS)
    a('s_cbranch_scc1 %s' % fin)
    a(fill[6])
    stamp(5)
    a('v_max3_f32 %s, %s, %s, %s' % (T(16), T(16), T(60), T(61)))
    a('v_mov_b32 %s, %s' % (T(17), T(16)))
    a('v_mov_b32 %s, 0' % T(5))
    a('v_mov_b32 %s, 0' % T(6))
    a('v_permlane32_swap_b32 %s, %s' % (T(16), T(17)))
    a('v_max_f32 %s, %s, %s' % (T(16), T(16), T(17)))
    a('v_mov_b32 %s, %s' % (T(17), T(16)))
    zero(44, 48)
    a('v_permlane16_swap_b32 %s, %s' % (T(16), T(17)))
    a('v_max_f32 %s, %s, %s' % (T(16), T(16), T(17)))
    a('v_mul_f32 %s, %s, %s' % (T(62), sC, T(16)))
    for r in range(8):
        a('v_fma_f32 %s, %s, %s, -%s' % (T(8 + r), T(8 + r), sC, T(62)))
    for r in range(8):
        a('v_exp_f32 %s, %s' % (T(8 + r), T(8 + r)))
    a('v_fma_f32 %s, %s, %s, -%s' % (T(60), T(60), sC, T(62)))
    for r in range(4):
        a('v_cvt_pk_bf16_f32 %s, %s, %s' % (T(r), T(8 + 2 * r), T(9 + 2 * r)))
    a('v_fma_f32 %s, %s, %s, -%s' % (T(61), T(61), sC, T(62)))
    a('v_exp_f32 %s, %s' % (T(60), T(60)))
    a(mf(8, 20, 0, '0'))
    a('v_exp_f32 %s, %s' % (T(61), T(61)))
    lwait('vx')
    a(mf(12, VX0, 0, '0'))
    a('v_cvt_pk_bf16_f32 %s, %s, %s' % (T(4), T(60), T(61)))
    a('v_cvt_pk_bf16_f32 %s, %s, %s' % (T(7), T(60), T(61)))
    a(mf(16, VX1, 0, '0'))
    zero(48, 52)
    m16 = lambda D, A, B: 'v_mfma_f32_16x16x16_bf16 %s, %s, %s, %s' % (T(D, 4), A, T(B, 2), T(D, 4))
    a(m16(8, T(20, 2), 4))
    zero(52, 56)
    a(m16(12, 'v[14:15]', 4))
    zero(56, 60)
    a(m16(16, 'v[14:15]', 6))
    zero(40, 44)
    a('v_rcp_f32 %s, %s' % (T(8), T(8)))
    for r in range(4):
        a('v_cndmask_b32 %s, %s, %s, %s' % (T(12 + r), T(16 + r), T(12 + r), sN8))
    for r in range(4):
        a('v_mul_f32 %s, %s, %s' % (T(12 + r), T(12 + r), T(8)))
    a('v_cvt_pk_bf16_f32 %s, %s, %s' % (T(12), T(12), T(13)))
    a('v_cvt_pk_bf16_f32 %s, %s, %s' % (T(13), T(14), T(15)))
    a('ds_write_b64 v7, %s' % T(12, 2))
    a('s_add_u32 %s, %s, 1' % (sS, sS))
    for s_, d in ((sMemL, 8192), (sMemRin, 16384), (sKM, 0x20000), (sVM, 0x20000)):
        a('s_add_u32 %s, %s, 0x%x' % (s_, s_, d))
    barrier()
    stamp(6)
    ds('ds_read_b128 %s, v1 offset:%d' % (T(16, 4), L_OI), 'o0')
    ds('ds_read_b128 %s, v1 offset:%d' % (T(20, 4), L_OI + 1024), 'o1')
    ldslot(0, ('O', 4), 0, 'w0')
    ldslot(8, ('O', 4), 1, 'w1')
    wo = [(slot(('O', t), 0), slot(('O', t), 1)) for t in range(3)] + [(B0, B1), (T(0, 8), T(8, 8))]
    store = lambda t: 'buffer_store_dword %s, v8, %s, %s offen%s' % (T(40 + 4 * t), WS, sP[t], loc)
    gaps = {i: [] for i in range(10)}
    for t in range(3):
        ops = pack_ops(40 + 4 * t)
        gaps[2 * t + 3] += ops[:2]
        gaps[2 * t + 4] += ops[2:]
        gaps[2 * t + 5].insert(0, store(t))
    for i in range(10):
        t, kc = i // 2, i & 1
        if i < 2:
            lwait('o%d' % i)
        if i >= 8:
            lwait('w%d' % kc)
        a(sm(40 + 4 * t, 16 + 4 * kc, wo[t][kc]))
        for x in gaps[i]:
            a(x)
    for x in pack_ops(52):
        a(x)
    p4 = pack_ops(56)
    a(p4[0])
    a(p4[1])
    a(p4[2])
    a(store(3))
    a(store(4))
    stamp(7)
    for t in range(5):
        a('s_xor_b32 %s, %s, 0x40000' % (sP[t], sP[t]))
    s0, sd = a.label('st0'), a.label('std')
    a('s_cmp_eq_u32 %s, 0' % sGRP)
    a('s_cbranch_scc1 %s' % s0)
    a('v_add_u32 %s, %s, v9' % (T(63), sVMl))
    a('ds_write_b64 %s, v[14:15]' % T(63))
    if G:
        a('s_branch %s' % sd)
        a(s0 + ':')
        a('s_lshl_b32 %s, %s, 11' % (sT0, sW))
        a('v_add_u32 v14, %s, v6' % sT0)
        a('s_lshl_b32 %s, %s, 10' % (sT0, sW))
        a('s_add_u32 %s, %s, 0x%x' % (sT0, sT0, L_KT))
        a('v_add_u32 v15, %s, v12' % sT0)
        for j in range(4):
            a('ds_read_b64_tr_b16 %s, v14 offset:%d' % (T(2 * j, 2), L_KT - UB + (j >> 1) * 1024 + (j & 1) * 256))
        a('s_waitcnt lgkmcnt(0)')
        a('ds_write_b128 v15, %s' % T(0, 4))
        a('ds_write_b128 v15, %s offset:512' % T(4, 4))
        a(sd + ':')
        if not opt.get('chain_only'):
            nochk, ag = a.label('nochk'), a.label('kvag')
            a('s_cmp_lg_u32 %s, 40' % sS)
            a('s_cbranch_scc1 %s' % nochk)
            a('s_mov_b32 %s, 0' % sSpin)
            a(ag + ':')
            a('buffer_load_dwordx2 v[14:15], off, %s, 0 offset:%d sc1' % (DBG, (D_KV + 6) * 4))
            spin_check(a)
            a('s_waitcnt vmcnt(0)')
            a('v_add_u32 v14, v14, v15')
            a('v_cmp_ne_u32 vcc, 64, v14')
            a('s_cbranch_vccnz %s' % ag)
            a(nochk + ':')
        backoff(a, opt.get('kvdelay', 220))
        kv_dma(a)
    else:
        a(s0 + ':')
    if not G:
        noown, again, okA, okB = a.label('noown'), a.label('oag'), a.label('ookA'), a.label('ookB')
        a('s_cmp_eq_u32 %s, 0' % sOwner)
        a('s_cbranch_scc1 %s' % noown)

        def loads(r):
            for t in range(4):
                a('buffer_load_dwordx4 %s, v12, %s, %s offen offset:%d sc1' % (
                    T(r + 4 * t, 4), WS, sOwn0 if t < 2 else sOwn1, 2048 * (t & 1)))

        def reduce_(r, young):
            for t in range(4):
                a('s_waitcnt vmcnt(%d)' % (young + 3 - t))
                a(mf(20, 16, r + 4 * t, '0' if t == 0 else T(20, 4)))
                x = r + 4 * t
                if t == 0:
                    a('v_max3_u32 %s, %s, %s, %s' % (T(44), T(x), T(x + 1), T(x + 2)))
                    a('v_max_u32 %s, %s, %s' % (T(44), T(44), T(x + 3)))
                else:
                    a('v_max3_u32 %s, %s, %s, %s' % (T(44), T(44), T(x), T(x + 1)))
                    a('v_max3_u32 %s, %s, %s, %s' % (T(44), T(44), T(x + 2), T(x + 3)))
            a('v_cmp_eq_u32 vcc, -1, %s' % T(44))
        a('v_and_b32 %s, 3, v0' % T(20))
        a('v_bfe_u32 %s, v0, 2, 1' % T(21))
        a('v_lshlrev_b32 %s, 4, %s' % (T(21), T(21)))
        a('v_mov_b32 %s, 0x3f80' % T(22))
        a('v_lshlrev_b32 %s, %s, %s' % (T(21), T(21), T(22)))
        for p in range(4):
            a('v_cmp_eq_u32 vcc, %d, %s' % (p, T(20)))
            a('v_cndmask_b32 %s, 0, %s, vcc' % (T(16 + p), T(21)))
        a('v_mov_b64 %s, -1' % T(40, 2))
        a('v_mov_b64 %s, -1' % T(42, 2))
        a('s_mov_b32 %s, 0' % sSpin)
        backoff(a, opt.get('odelay', 100))
        loads(0)
        backoff(a, opt.get('ospace', 80))
        loads(24)
        a(again + ':')
        for r in (0, 24):
            reduce_(r, 4)
            a('s_cbranch_vccz %s' % okA)
            loads(r)
            if st:
                a('s_add_u32 %s, %s, 0x100' % (sRetry, sRetry))
        spin_check(a)
        a('s_branch %s' % again)
        a(okA + ':')
        a('s_nop 2')
        for r in range(4):
            a('v_add_f32_dpp %s, %s, %s row_ror:8 row_mask:0xf bank_mask:0xf' % (T(20 + r), T(20 + r), T(20 + r)))
        a('v_cvt_pk_bf16_f32 %s, %s, %s' % (T(20), T(20), T(21)))
        a('v_cvt_pk_bf16_f32 %s, %s, %s' % (T(21), T(22), T(23)))
        a('s_mov_b64 exec, 0x00ff00ff')
        a('buffer_store_dwordx2 %s, v13, %s, %s offen%s' % (T(20, 2), WS, sPubL, loc))
        a('buffer_store_dwordx2 %s, v13, %s, %s offen sc1' % (T(20, 2), WS, sPubR))
        a('s_mov_b64 exec, -1')
        a('s_waitcnt lgkmcnt(0)')
        a('s_barrier')
        stamp(8)
        for t in range(4):
            a('buffer_store_dwordx4 %s, v12, %s, %s offen offset:%d%s' % (
                T(40, 4), WS, sOwn0 if t < 2 else sOwn1, 2048 * (t & 1), loc))
        a('s_waitcnt vmcnt(6)')
        a('s_xor_b32 %s, %s, 0x40000' % (sOwn0, sOwn0))
        a('s_xor_b32 %s, %s, 0x40000' % (sOwn1, sOwn1))
        a('s_add_u32 %s, %s, 8192' % (sPubL, sPubL))
        a('s_add_u32 %s, %s, 16384' % (sPubR, sPubR))
        if st:
            dump_stamps(a)
        a('s_branch %s' % head)
        a(noown + ':')
        a('s_waitcnt vmcnt(0) lgkmcnt(0)')
        a('s_barrier')
        stamp(8)
        backoff(a, 80)
    else:
        stamp(8)
    if st:
        dump_stamps(a)
    a('s_branch %s' % head)


def dump_stamps(a):
    a('s_lshl_b32 %s, %s, 5' % (sT0, sGRP))
    a('s_add_u32 %s, %s, %s' % (sT0, sT0, sIDX))
    a('s_lshl_b32 %s, %s, 2' % (sT0, sT0))
    a('s_add_u32 %s, %s, %s' % (sT0, sT0, sW))
    a('s_lshl_b32 %s, %s, 6' % (sT0, sT0))
    a('s_add_u32 %s, %s, %s' % (sT0, sT0, sS))
    a('s_lshl_b32 %s, %s, 6' % (sT0, sT0))
    a('s_add_u32 %s, %s, 0x%x' % (sT0, sT0, STAMP + 4096))
    a('s_waitcnt lgkmcnt(0)')
    for i in range(9):
        a('v_writelane_b32 %s, s%d, %d' % (T(62), 64 + 2 * i, i))
    a('v_writelane_b32 %s, %s, 12' % (T(62), sRetry))
    a('v_lshrrev_b32 %s, 2, v1' % T(63))
    a('s_mov_b64 exec, 0x1fff')
    a('buffer_store_dword %s, %s, %s, %s offen' % (T(62), T(63), WS, sT0))
    a('s_mov_b64 exec, -1')
```

```python
MiB = 1 << 20
WS_BYTES = 256 * MiB
KV = 0
QX = 32 * MiB
OB = 48 * MiB
KMVM = 64 * MiB
MEMR = 72 * MiB
MEML = 74 * MiB
PART = 75 * MiB
FLG = 76 * MiB
FLG2 = FLG + 16384
DUMP = 76 * MiB + 65536
STAMP = 77 * MiB
STAMP_END = 80 * MiB
AW = 80 * MiB
AWO = 83 * MiB
KP = 84 * MiB
KF = 88 * MiB
OA = 89 * MiB

D_VER = 0
D_INIT = 16
D_CAL = 17
D_KV = 32
D_Q = 36
D_A0 = 48
D_A1 = 49
D_A2 = 53
D_A3 = 57
```

```python
import math
import struct
from layout import *
from chain import sW, sGRP, sIDX, sSAFE, sT0, sT1, sT2, sT3, sSpin, WS, DBG, srd, verdict, spin_check, backoff

sJ = 's32'
sRB, sCT, sKIND = 's33', 's34', 's35'
sXo, sWo, sK, sBase = 's36', 's37', 's38', 's39'
sRound = 's40'
XS, WSR = 's[12:15]', 's[16:19]'


def V(i, n=1):
    return 'v%d' % i if n == 1 else 'v[%d:%d]' % (i, i + n - 1)


def A(i, n=1):
    return 'a%d' % i if n == 1 else 'a[%d:%d]' % (i, i + n - 1)


def signal(a, word_sgpr_or_imm):
    skip = a.label('sig')
    a('s_waitcnt vmcnt(0)')
    a('s_barrier')
    a('s_cmp_lg_u32 %s, 0' % sW)
    a('s_cbranch_scc1 %s' % skip)
    a('s_mov_b64 exec, 1')
    a('v_mov_b32 v2, 1')
    a('buffer_atomic_add v2, off, %s, %s sc1' % (DBG, word_sgpr_or_imm))
    a('s_mov_b64 exec, -1')
    a(skip + ':')


def wait_dbg(a, conds, tmp='v2'):
    again = a.label('wd')
    a('s_mov_b32 %s, 0' % sSpin)
    a('s_branch %s' % (again + 'a'))
    a(again + ':')
    a('s_sleep 8')
    a(again + 'a:')
    a('v_lshlrev_b32 %s, 2, v0' % tmp)
    a('buffer_load_dword %s, %s, %s, 0 offen sc1' % (tmp, tmp, DBG))
    spin_check(a)
    a('s_waitcnt vmcnt(0)')
    for w, val in conds:
        a('v_readlane_b32 %s, %s, %s' % (sT0, tmp, w))
        a('s_cmp_lg_u32 %s, %d' % (sT0, val))
        a('s_cbranch_scc1 %s' % again)


XF, WF = 16, 48
vXA, vWA = 80, 82
vXD, vWD = 88, 90
vEP = 92
sSlot = 's43'


def b1_setup(a):
    t0, t1, t2, t3 = V(4), V(5), V(6), V(7)
    a('s_lshr_b32 %s, %s, 1' % (sT0, sW))
    a('s_and_b32 %s, %s, 1' % (sT1, sW))
    a('v_and_b32 %s, 31, v0' % t0)
    a('v_lshrrev_b32 %s, 5, v0' % t1)
    a('v_bfe_u32 %s, v0, 2, 2' % t2)
    a('s_lshl_b32 %s, %s, 13' % (sT2, sT0))
    for kk in range(2):
        a('v_add_u32 %s, %d, %s' % (t3, 2 * kk, t1))
        a('v_xor_b32 %s, %s, %s' % (t3, t3, t2))
        a('v_lshlrev_b32 %s, 4, %s' % (t3, t3))
        a('v_lshl_add_u32 %s, %s, 6, %s' % (t3, t0, t3))
        a('v_add_u32 %s, %s, %s' % (V(vXA + kk), sT2, t3))
    a('v_bfe_u32 %s, v0, 2, 2' % t0)
    a('v_lshl_add_u32 %s, %s, 3, %s' % (t1, t1, t0))
    a('v_lshlrev_b32 %s, 9, %s' % (t1, t1))
    a('v_bfe_u32 %s, v0, 4, 1' % t2)
    a('v_lshlrev_b32 %s, 5, %s' % (t2, t2))
    a('v_add_u32 %s, %s, %s' % (t1, t1, t2))
    a('v_and_b32 %s, 3, v0' % t2)
    a('v_lshl_add_u32 %s, %s, 3, %s' % (t1, t2, t1))
    a('s_lshl_b32 %s, %s, 8' % (sT2, sT1))
    a('s_add_u32 %s, %s, 16384' % (sT2, sT2))
    for t in range(4):
        a('v_xor_b32 %s, %d, %s' % (t3, t, t0))
        a('v_lshl_add_u32 %s, %s, 6, %s' % (t3, t3, t1))
        a('v_add_u32 %s, %s, %s' % (V(vWA + t), sT2, t3))
    a('v_lshrrev_b32 %s, 2, v0' % t0)
    a('v_mul_u32_u24 %s, 1280, %s' % (t0, t0))
    a('v_and_b32 %s, 3, v0' % t1)
    a('v_lshrrev_b32 %s, 4, v0' % t2)
    a('v_xor_b32 %s, %s, %s' % (t3, t2, t1))
    a('v_lshl_add_u32 %s, %s, 4, %s' % (V(vXD), t3, t0))
    a('v_lshrrev_b32 %s, 5, v0' % t0)
    a('v_and_b32 %s, 31, v0' % t1)
    for p in range(2):
        a('v_add_u32 %s, %d, %s' % (t3, 2 * p, t0))
        a('v_lshlrev_b32 %s, 2, %s' % (t3, t3))
        a('v_xor_b32 %s, %s, %s' % (t3, t3, t1))
        a('v_lshlrev_b32 %s, 4, %s' % (t3, t3))
        a('v_lshl_add_u32 %s, %s, 13, %s' % (V(vWD + p), t0, t3))
    a('v_and_b32 %s, 15, v0' % t1)
    a('v_lshlrev_b32 %s, 4, %s' % (t1, t1))
    a('v_lshl_add_u32 %s, %s, 8, %s' % (t1, t0, t1))
    a('v_bfe_u32 %s, v0, 4, 1' % t2)
    a('v_lshl_add_u32 %s, %s, 12, %s' % (V(vEP), t2, t1))
    a('v_lshl_add_u32 %s, %s, 10, %s' % (V(vEP + 1), t2, t1))


def b1_dma():
    ops = [['s_add_u32 m0, %s, %s' % (sBase, sSlot)]]
    for j in range(4):
        ops.append(['s_add_u32 %s, %s, %d' % (sT0, sXo, j * 16 * 1280 - j * 1024),
                    'buffer_load_dwordx4 %s, %s, %s offen offset:%d lds' % (V(vXD), XS, sT0, j * 1024)])
    ops.append(['s_add_u32 m0, m0, 16384'])
    for j in range(4):
        ops.append(['s_add_u32 %s, %s, %d' % (sT0, sWo, j * 2 * 8192 - j * 1024),
                    'buffer_load_dwordx4 %s, %s, %s offen offset:%d lds' % (V(vWD + (j & 1)), WSR, sT0, j * 1024)])
    ops.append(['s_add_u32 %s, %s, 64' % (sXo, sXo), 's_add_u32 %s, %s, 0x%x' % (sWo, sWo, 32 * 8192),
                's_add_u32 %s, %s, 0x8000' % (sSlot, sSlot), 's_and_b32 %s, %s, 0x1ffff' % (sSlot, sSlot)])
    return ops


def b1_frags(kk, buf):
    ops = []
    for i in range(4):
        ops.append('ds_read_b128 %s, %s offset:%d' % (V(XF + 16 * buf + 4 * i, 4), V(vXA + kk), 2048 * i))
        for s_ in range(2):
            ops.append('ds_read_b64_tr_b16 %s, %s offset:%d' % (
                V(WF + 16 * buf + 4 * i + 2 * s_, 2), V(vWA + i), (16 * kk + 4 * s_) * 512))
    return ops


def b1_main(a, vmode, done, opt):
    loop = a.label('b1loop')
    if opt.get('wstamps'):
        wstamp(a, 2, True)
    a('s_waitcnt vmcnt(16)')
    a('s_barrier')
    for x in b1_frags(0, 0):
        a(x)
    a(loop + ':')
    dma = b1_dma()
    if opt.get('nodmax'):
        dma = [o for o in dma if not any(XS in x for x in o)]
    if opt.get('nodmaw'):
        dma = [o for o in dma if not any(WSR in x for x in o)]
    for kk in range(2):
        nxt = b1_frags(kk ^ 1, kk ^ 1)
        a('s_waitcnt lgkmcnt(0)')
        for m in range(16):
            i, t = m >> 2, m & 3
            x, w = V(XF + 16 * kk + 4 * i, 4), V(WF + 16 * kk + 4 * t, 4)
            d = A(64 * i + 16 * t, 16)
            a('v_mfma_f32_32x32x16_bf16 %s, %s, %s, %s' % (d, x if vmode else w, w if vmode else x, d))
            if kk == 0:
                if m < 12:
                    a(nxt[m])
                if m >= 4:
                    for x_ in (dma.pop(0) if dma else []):
                        a(x_)
            else:
                if m < 2:
                    for r in range(3 * m, 3 * m + 3):
                        a('v_add_u32 %s, 0x8000, %s' % (V(vXA + r), V(vXA + r)))
                        a('v_and_b32 %s, 0x1ffff, %s' % (V(vXA + r), V(vXA + r)))
                if m == 2:
                    a('s_add_u32 %s, %s, 1' % (sK, sK))
                    a('s_waitcnt vmcnt(16)')
                    a('s_barrier')
                if 3 <= m < 15:
                    a(nxt[m - 3])
    assert not dma
    a('s_cmp_lt_u32 %s, 20' % sK)
    a('s_cbranch_scc1 %s' % loop)
    a('s_waitcnt lgkmcnt(0)')
    if opt.get('wstamps'):
        wstamp(a, 3, True)
    a('s_lshr_b32 %s, %s, 1' % (sT0, sW))
    a('s_lshl_b32 %s, %s, 3' % (sT1, sRB))
    a('s_lshl_b32 %s, %s, 2' % (sT0, sT0))
    a('s_add_u32 %s, %s, %s' % (sT0, sT0, sT1))
    a('s_lshl_b32 %s, %s, 5' % (sT0, sT0))
    a('s_and_b32 %s, %s, 1' % (sT1, sW))
    a('s_add_u32 %s, %s, %s' % (sT0, sT0, sT1))
    a('s_lshl_b32 %s, %s, 1' % (sT1, sCT))
    a('s_add_u32 %s, %s, %s' % (sT0, sT0, sT1))
    if vmode:
        a('s_lshl_b32 %s, %s, 14' % (sT0, sT0))
        a('s_add_u32 %s, %s, 0x%x' % (sT0, sT0, KV + 8192))
        a('s_mov_b32 %s, 0x80000' % sT2)
    else:
        a('s_cmp_eq_u32 %s, 2' % sKIND)
        a('s_cselect_b32 %s, 13, 14' % sT1)
        a('s_lshl_b32 %s, %s, %s' % (sT0, sT0, sT1))
        a('s_cmp_eq_u32 %s, 2' % sKIND)
        a('s_cselect_b32 %s, 0x%x, 0' % (sT1, QX))
        a('s_add_u32 %s, %s, %s' % (sT0, sT0, sT1))
        a('s_cmp_eq_u32 %s, 2' % sKIND)
        a('s_cselect_b32 %s, 0x40000, %s' % (sT2, sHalfM))
    verdict_point(a)
    n = 0
    for i in range(4):
        a('s_add_u32 %s, %s, 4096' % (sT1, sT0))
        for t in range(4):
            for u in range(2):
                src = list(range(8 * u, 8 * u + 8)) if not vmode else \
                    list(range(4 * u, 4 * u + 4)) + list(range(8 + 4 * u, 12 + 4 * u))
                b = 16 + 12 * (n % 4)
                n += 1
                for j, r in enumerate(src):
                    a('v_accvgpr_read_b32 %s, %s' % (V(b + 4 + j), A(64 * i + 16 * t + r)))
                for j in range(4):
                    a('v_cvt_pk_bf16_f32 %s, %s, %s' % (V(b + j), V(b + 4 + 2 * j), V(b + 5 + 2 * j)))
                if vmode:
                    a('buffer_store_dwordx4 %s, %s, %s, %s offen offset:%d sc1' % (
                        V(b, 4), V(vEP + 1), WS, sT0 if t < 2 else sT1, (t & 1) * 2048 + u * 512))
                else:
                    a('buffer_store_dwordx4 %s, %s, %s, %s offen offset:%d sc1' % (
                        V(b, 4), V(vEP), WS, sT0, t * 1024 + u * 512))
        a('s_add_u32 %s, %s, %s' % (sT0, sT0, sT2))
    a('s_branch %s' % done)


sHalfM = 's41'
_VP = {}


def verdict_point(a):
    skip = a.label('vp')
    a('s_cmp_lg_u32 %s, 0' % sRound)
    a('s_cbranch_scc1 %s' % skip)
    a('s_mov_b32 s42, %s' % sT0)
    a('v_lshlrev_b32 v2, 2, v0')
    a('buffer_load_dword v2, v2, %s, 0 offen sc1' % DBG)
    a('s_waitcnt vmcnt(0)')
    verdict(a, 'v2')
    a('s_mov_b32 %s, s42' % sT0)
    a(skip + ':')


def gen_b1(a, opt):
    srd(a, 12, 72, 2621440)
    b1_setup(a)
    a('s_mov_b32 %s, 0x80000' % sHalfM)
    a('s_mov_b32 %s, 0' % sRound)
    rnd, r2, go = a.label('b1round'), a.label('b1r2'), a.label('b1go')
    a(rnd + ':')
    a('s_cmp_lg_u32 %s, 0' % sRound)
    a('s_cbranch_scc1 %s' % r2)
    a('s_mul_i32 %s, %s, 43691' % (sCT, sJ))
    a('s_lshr_b32 %s, %s, 18' % (sCT, sCT))
    a('s_mul_i32 %s, %s, 6' % (sT0, sCT))
    a('s_sub_u32 %s, %s, %s' % (sRB, sJ, sT0))
    a('s_lshr_b32 %s, %s, 4' % (sKIND, sCT))
    a('s_and_b32 %s, %s, 15' % (sCT, sCT))
    a('s_branch %s' % go)
    a(r2 + ':')
    a('s_lshr_b32 %s, %s, 1' % (sCT, sJ))
    a('s_and_b32 %s, %s, 1' % (sRB, sJ))
    a('s_add_u32 %s, %s, 6' % (sRB, sRB))
    a('s_lshr_b32 %s, %s, 4' % (sKIND, sCT))
    a('s_and_b32 %s, %s, 15' % (sCT, sCT))
    a('s_cmp_lt_u32 %s, 64' % sJ)
    a('s_cbranch_scc1 %s' % go)
    a('s_sub_u32 %s, %s, 64' % (sT0, sJ))
    a('s_lshr_b32 %s, %s, 3' % (sCT, sT0))
    a('s_and_b32 %s, %s, 7' % (sRB, sT0))
    a('s_mov_b32 %s, 2' % sKIND)
    a(go + ':')
    a('s_cmp_eq_u32 %s, 0' % sKIND)
    a('s_cselect_b64 s[16:17], s[78:79], s[80:81]')
    a('s_cmp_eq_u32 %s, 2' % sKIND)
    a('s_cselect_b64 s[16:17], s[76:77], s[16:17]')
    a('s_and_b32 s17, s17, 0xffff')
    a('s_mov_b32 s18, 5242880')
    a('s_mov_b32 s19, 0x20000')
    a('s_lshl_b32 %s, %s, 12' % (sBase, sW))
    a('s_lshl_b32 %s, %s, 8' % (sT0, sRB))
    a('s_lshl_b32 %s, %s, 6' % (sT1, sW))
    a('s_add_u32 %s, %s, %s' % (sT0, sT0, sT1))
    a('s_mul_i32 %s, %s, 1280' % (sXo, sT0))
    a('s_lshl_b32 %s, %s, 16' % (sT0, sW))
    a('s_lshl_b32 %s, %s, 9' % (sT1, sCT))
    a('s_add_u32 %s, %s, %s' % (sWo, sT0, sT1))
    a('s_mov_b32 %s, 0' % sK)
    a('s_mov_b32 %s, 0' % sSlot)
    for _ in range(3):
        for ops in b1_dma():
            for x in ops:
                a(x)
    for r in range(256):
        a('v_accvgpr_write_b32 %s, 0' % A(r))
    vm, done = a.label('b1v'), a.label('b1done')
    a('s_cmp_eq_u32 %s, 1' % sKIND)
    a('s_cbranch_scc1 %s' % vm)
    b1_main(a, False, done, opt)
    a(vm + ':')
    b1_main(a, True, done, opt)
    a(done + ':')
    a('s_cmp_eq_u32 %s, 2' % sKIND)
    a('s_cselect_b32 %s, %d, %d' % (sT1, D_Q, D_KV))
    a('s_add_u32 %s, %s, %s' % (sT1, sT1, sRB))
    a('s_lshl_b32 %s, %s, 2' % (sT1, sT1))
    if opt.get('wstamps'):
        a('s_mov_b32 s44, %s' % sT1)
        wstamp(a, 4, True)
        a('s_mov_b32 %s, s44' % sT1)
    signal(a, sT1)
    if opt.get('wstamps'):
        wstamp(a, 5, True)
    a('s_add_u32 %s, %s, 1' % (sRound, sRound))
    a('s_cmp_lt_u32 %s, 2' % sRound)
    a('s_cbranch_scc1 %s' % rnd)


def gen_workers(a, opt):
    a('s_sub_u32 %s, %s, 2' % (sT0, sGRP))
    a('s_lshl_b32 %s, %s, 5' % (sJ, sT0))
    a('s_add_u32 %s, %s, %s' % (sJ, sJ, sIDX))
    if opt.get('wstamps'):
        a('s_memrealtime s[92:93]')
    gen_b1(a, opt)
    if opt.get('wstamps'):
        wstamp(a, 1)
    if opt.get('b1_only'):
        a('s_branch L_end')
        return
    import bpart
    bpart.gen_b23(a, opt)


def wstamp(a, i, by_round=False):
    a('s_memrealtime s[94:95]')
    a('s_lshl_b32 %s, %s, 6' % (sT0, sJ))
    a('s_add_u32 %s, %s, 0x%x' % (sT0, sT0, STAMP + 0x200000))
    a('s_waitcnt lgkmcnt(0)')
    a('v_mov_b32 v250, s92')
    a('v_mov_b32 v251, s94')
    a('buffer_store_dword v250, off, %s, %s' % (WS, sT0))
    if by_round:
        a('s_lshl_b32 %s, %s, 4' % (sT1, sRound))
        a('s_add_u32 %s, %s, %s' % (sT0, sT0, sT1))
    a('buffer_store_dword v251, off, %s, %s offset:%d' % (WS, sT0, 4 * i))
    a('s_waitcnt vmcnt(0)') if not by_round else None
```

```python
import sys
from asmlib import Asm
from layout import *
import chain
from chain import sW, sGRP, sIDX, sSAFE, sT0, sT1, sT2, sT3, sSpin, WS, DBG, srd

NAME = 'concat_heads__linear_kernel_hedgehog__memory_aug_recurrent_mem_tr__prompt'
HEAD = open('cdna_kernels/%s.s.ref' % NAME).read().split('; Override launch')[0]


def calibrate(a):
    skip = a.label('nocal')
    a('s_cmp_lg_u32 %s, 2' % sGRP)
    a('s_cbranch_scc1 %s' % skip)
    a('s_or_b32 %s, %s, %s' % (sT0, sIDX, sW))
    a('s_cmp_lg_u32 %s, 0' % sT0)
    a('s_cbranch_scc1 %s' % skip)
    a('s_mov_b64 exec, 1')
    a('v_mov_b32 v1, 0')
    a('s_mov_b32 s32, 0x%x' % (MEMR + 6144))
    a('s_mov_b32 s33, 0x%x' % (MEMR + 8192 + 6144))
    a('s_mov_b32 s38, -1')
    a('s_mov_b32 s39, -1')
    a('buffer_store_dword v1, off, %s, s32 sc1' % WS)
    a('buffer_store_dword v1, off, %s, s33 sc1' % WS)
    a('s_waitcnt vmcnt(0)')
    a('s_memtime s[36:37]')
    for i in range(1, 7):
        for c in range(2):
            a('buffer_store_dword v1, off, %s, s%d offset:%d sc1' % (WS, 32 + c, 128 * i))
            a('s_waitcnt vmcnt(0) lgkmcnt(0)')
            a('s_mov_b32 s35, s36')
            a('s_memtime s[36:37]')
            a('s_waitcnt lgkmcnt(0)')
            a('s_sub_u32 s35, s36, s35')
            a('s_min_u32 s%d, s%d, s35' % (38 + c, 38 + c))
    a('s_sub_u32 s34, s38, s39')
    a('s_lshl_b32 s35, s38, 16')
    a('s_or_b32 s35, s35, s39')
    a('v_mov_b32 v1, s35')
    a('buffer_store_dword v1, off, %s, 0 offset:%d sc1' % (DBG, D_CAL * 4 + 4))
    a('s_cmp_gt_i32 s34, 0')
    a('s_cselect_b32 s34, 3, 2')
    a('v_mov_b32 v1, s34')
    a('buffer_store_dword v1, off, %s, 0 offset:%d sc1' % (DBG, D_CAL * 4))
    a('s_mov_b64 exec, -1')
    a(skip + ':')


def build(opt):
    a = Asm()
    k = NAME + '_kernel'
    a('.amdgcn_target "amdgcn-amd-amdhsa--gfx950"')
    a('.text')
    a('.globl %s' % k)
    a('.p2align 8')
    a('.type %s,@function' % k)
    a(k + ':')
    a('s_cmp_ge_u32 s2, 256')
    a('s_cbranch_scc1 L_end0')
    a('s_load_dwordx16 s[64:79], s[0:1], 0')
    a('s_load_dwordx8 s[80:87], s[0:1], 64')
    a('s_load_dwordx4 s[88:91], s[0:1], 96')
    a('s_getreg_b32 %s, hwreg(HW_REG_XCC_ID, 0, 4)' % sGRP)
    a('v_lshrrev_b32 v1, 6, v0')
    a('v_and_b32 v0, 63, v0')
    a('v_readfirstlane_b32 %s, v1' % sW)
    a('s_lshr_b32 %s, s2, 3' % sIDX)
    a('s_mov_b32 %s, 0' % sSAFE)
    if opt.get('force_safe'):
        a('s_mov_b32 %s, 8' % sGRP)
    a('s_waitcnt lgkmcnt(0)')
    srd(a, 4, 90, WS_BYTES)
    srd(a, 8, 88, 256)
    nw = a.label('nw')
    a('s_cmp_lg_u32 %s, 0' % sW)
    a('s_cbranch_scc1 %s' % nw)
    a('s_lshl_b32 %s, 1, %s' % (sT0, sIDX))
    a('s_lshl_b32 %s, %s, 3' % (sT1, sGRP))
    a('s_mov_b32 %s, 1' % sT2)
    a('s_cmp_lt_u32 %s, 8' % sGRP)
    a('s_cselect_b32 %s, %s, 0' % (sT0, sT0))
    a('s_cselect_b32 %s, %s, 0' % (sT1, sT1))
    a('s_cselect_b32 %s, %s, 0x10000' % (sT2, sT2))
    a('s_mov_b64 exec, 1')
    a('v_mov_b32 v2, %s' % sT0)
    a('v_mov_b32 v3, %s' % sT2)
    a('buffer_atomic_add_x2 v[2:3], off, %s, %s sc1' % (DBG, sT1))
    a('s_mov_b64 exec, -1')
    a(nw + ':')
    a('s_cmp_lt_u32 %s, 8' % sGRP)
    a('s_cbranch_scc1 L_dispatch')
    a('L_fallback:')
    a('s_waitcnt vmcnt(0) lgkmcnt(0)')
    a('s_barrier')
    a('s_mov_b32 %s, 1' % sSAFE)
    a('s_lshr_b32 %s, s2, 5' % sGRP)
    a('s_and_b32 %s, s2, 31' % sIDX)
    a('L_dispatch:')
    a('s_cmp_lt_u32 %s, 2' % sGRP)
    a('s_cbranch_scc1 L_chain')
    calibrate(a)
    if opt.get('chain_only'):
        a('v_lshlrev_b32 v1, 2, v0')
        a('buffer_load_dword v1, v1, %s, 0 offen sc1' % DBG)
        a('s_waitcnt vmcnt(0)')
        chain.verdict(a, 'v1')
        a('s_branch L_end')
    else:
        import workers
        workers.gen_workers(a, opt)
    a('L_end0:')
    a('s_endpgm')
    chain.gen_chain(a, opt)
    a('L_end:')
    a('s_endpgm')
    body = a.finish()
    txt = HEAD + '; @launch grid=(256,1,1) block=(256,1,1) lds=163840\n' + body
    txt += '''.section .rodata,"a"
.p2align 6
.amdhsa_kernel %s
  .amdhsa_next_free_vgpr 512
  .amdhsa_next_free_sgpr 102
  .amdhsa_accum_offset 256
  .amdhsa_group_segment_fixed_size 0
  .amdhsa_kernarg_size 112
  .amdhsa_user_sgpr_count 2
  .amdhsa_user_sgpr_kernarg_segment_ptr 1
  .amdhsa_system_sgpr_workgroup_id_x 1
  .amdhsa_float_denorm_mode_32 3
.end_amdhsa_kernel
''' % k
    return txt, a.pads


if __name__ == '__main__':
    out = sys.argv[1]
    opt = {}
    for o in sys.argv[2:]:
        k_, _, v_ = o.partition('=')
        opt[k_] = int(v_) if v_ else True
    txt, pads = build(opt)
    open(out, 'w').write(txt)
    print('wrote', out, len(txt), 'bytes', txt.count('\n'), 'lines', pads, 'pads')
```

```python
from layout import *
from chain import sW, sGRP, sIDX, sT0, sT1, sT2, sT3, sSpin, WS, DBG, srd, spin_check
from workers import V, A, wait_dbg, wstamp, signal

sA, sHG, sTB, sP, sH, sX, sY, sK, sL2E, sBIG = ['s%d' % i for i in range(33, 43)]
LOG2E = 0x3fb8aa3b
M32 = 'v_mfma_f32_32x32x16_bf16'
M16 = 'v_mfma_f32_16x16x32_bf16'


def kstep_off(ks):
    return (20 * (ks // 10) + ks % 10) * 16


def gen_a0(a):
    JUNK = 51200
    a('s_lshr_b32 %s, %s, 4' % (sP, sA))
    a('s_bfe_u32 %s, %s, 0x20002' % (sT3, sA))
    a('s_and_b32 %s, %s, 3' % (sK, sA))
    srd(a, 16, 68, 25600)
    a('s_cmp_eq_u32 %s, 3' % sP)
    a('s_cselect_b64 s[12:13], s[70:71], s[66:67]')
    a('s_and_b32 s13, s13, 0xffff')
    a('s_cmp_eq_u32 %s, 3' % sP)
    a('s_mov_b32 %s, 819200' % sT1)
    a('s_cselect_b32 s14, %s, 2457600' % sT1)
    a('s_mov_b32 s15, 0x20000')
    a('s_movk_i32 %s, 1280' % sT1)
    a('s_cselect_b32 %s, %s, 3840' % (sX, sT1))
    a('s_mul_i32 %s, %s, 1280' % (sT1, sP))
    a('s_cselect_b32 %s, 0, %s' % (sT1, sT1))
    a('s_lshl_b32 %s, %s, 3' % (sH, sT3))
    a('s_lshl_b32 %s, %s, 1' % (sT2, sW))
    a('s_add_u32 %s, %s, %s' % (sH, sH, sT2))
    a('s_mul_i32 %s, %s, 40' % (sT2, sH))
    a('s_add_u32 %s, %s, %s' % (sT1, sT1, sT2))
    a('s_mul_i32 %s, %s, 160' % (sT2, sK))
    a('s_mul_i32 %s, %s, %s' % (sT2, sT2, sX))
    a('s_add_u32 %s, %s, %s' % (sY, sT1, sT2))
    a('v_and_b32 v4, 15, v0')
    a('v_lshrrev_b32 v5, 4, v0')
    a('v_mul_lo_u32 v6, v4, %s' % sX)
    a('v_lshl_add_u32 v6, v5, 4, v6')
    a('s_lshl_b32 %s, %s, 4' % (sX, sX))
    for dt in range(10):
        for hh in range(2):
            a('buffer_load_dwordx4 %s, v6, s[12:15], %s offen offset:%d' % (V(64 + 40 * hh + 4 * dt, 4), sY, 40 * hh))
        a('s_add_u32 %s, %s, %s' % (sY, sY, sX))
    a('s_mul_i32 %s, %s, 800' % (sT1, sH))
    ident, done = a.label('a0id'), a.label('a0b')
    a('s_cmp_ge_u32 %s, 2' % sP)
    a('s_cbranch_scc1 %s' % ident)
    for tau in range(2):
        for j in range(8):
            a('v_lshl_add_u32 v7, v5, 3, %d' % j)
            a('v_add_u32 v8, %d, v4' % (16 * tau))
            a('v_max_u32 v9, v7, v8')
            a('v_mul_u32_u24 v7, 40, v7')
            a('v_lshl_add_u32 v7, v8, 1, v7')
            a('v_cmp_gt_u32 vcc, 20, v9')
            a('v_cndmask_b32 v7, %s, v7, vcc' % V(2))
            for hh in range(2):
                a('buffer_load_ushort %s, v7, s[16:19], %s offen offset:%d' % (
                    V(160 + 16 * hh + 8 * tau + j), sT1, 800 * hh))
    a('s_branch %s' % done)
    a(ident + ':')
    a('v_mov_b32 v9, 0x3f80')
    for tau in range(2):
        for j in range(8):
            a('v_lshl_add_u32 v7, v5, 3, %d' % j)
            a('v_add_u32 v8, %d, v4' % (16 * tau))
            a('v_cmp_eq_u32 vcc, v7, v8')
            for hh in range(2):
                a('v_cndmask_b32 %s, 0, v9, vcc' % V(160 + 16 * hh + 8 * tau + j))
    a(done + ':')
    a('s_lshr_b32 %s, %s, 1' % (sT2, sW))
    a('s_lshl_b32 %s, %s, 6' % (sT2, sT2))
    a('v_lshrrev_b32 v10, 1, v5')
    a('v_mul_u32_u24 v10, 5120, v10')
    a('v_and_b32 v11, 1, v5')
    a('v_lshl_add_u32 v10, v11, 3, v10')
    a('v_add_u32 v10, %s, v10' % sT2)
    a('s_and_b32 %s, %s, 1' % (sT1, sW))
    a('s_mul_i32 %s, %s, 40' % (sT1, sT1))
    a('v_mov_b32 v3, %d' % JUNK)
    for hh in range(2):
        for tau in range(2):
            a('v_add_u32 v8, %d, v4' % (16 * tau))
            a('v_add3_u32 v7, v8, %s, %d' % (sT1, 20 * hh))
            a('v_lshrrev_b32 v9, 4, v7')
            a('v_lshl_add_u32 v9, v9, 10, v10')
            a('v_bfe_u32 v11, v7, 2, 2')
            a('v_lshl_add_u32 v9, v11, 7, v9')
            a('v_and_b32 v11, 3, v7')
            a('v_lshl_add_u32 v9, v11, 4, v9')
            a('v_cmp_gt_u32 vcc, 20, v8')
            a('v_cndmask_b32 %s, v3, v9, vcc' % V(12 + 2 * hh + tau))
    a('s_waitcnt vmcnt(0)')
    for p in range(16):
        a('v_lshl_or_b32 %s, %s, 16, %s' % (V(16 + p), V(161 + 2 * p), V(160 + 2 * p)))
    for dt in range(10):
        off = ((2 * dt) % 10) * 5120 + (2 * dt // 10) * 512
        b = 32 + 16 * (dt & 1)
        for k in range(4):
            a('%s %s, %s, %s, 0' % (M16, V(b + 4 * k, 4), V(64 + 40 * (k >> 1) + 4 * dt, 4), V(16 + 4 * k, 4)))
        for k in range(4):
            a('v_cvt_pk_bf16_f32 %s, %s, %s' % (V(b + 4 * k), V(b + 4 * k), V(b + 4 * k + 1)))
            a('v_cvt_pk_bf16_f32 %s, %s, %s' % (V(b + 4 * k + 1), V(b + 4 * k + 2), V(b + 4 * k + 3)))
        for k in range(4):
            a('ds_write_b64 %s, %s offset:%d' % (V(12 + k), V(b + 4 * k, 2), off))
    a('s_cmp_eq_u32 %s, 3' % sP)
    a('s_cselect_b32 %s, 5, 15' % sT0)
    a('s_lshl_b32 %s, %s, 10' % (sX, sT0))
    a('s_mul_i32 %s, %s, 4' % (sT1, sT3))
    a('s_add_u32 %s, %s, %s' % (sT1, sT1, sK))
    a('s_mul_i32 %s, %s, 10' % (sT1, sT1))
    a('s_mul_i32 %s, %s, %s' % (sT1, sT1, sX))
    a('s_mul_i32 %s, %s, 5120' % (sT2, sP))
    a('s_add_u32 %s, %s, 0x%x' % (sT2, sT2, AW))
    a('s_cmp_eq_u32 %s, 3' % sP)
    a('s_cselect_b32 %s, 0x%x, %s' % (sT2, AWO, sT2))
    a('s_add_u32 %s, %s, %s' % (sY, sT1, sT2))
    a('v_lshlrev_b32 v1, 4, v0')
    a('s_lshl_b32 %s, %s, 10' % (sT0, sW))
    a('v_add_u32 v7, %s, v1' % sT0)
    a('s_waitcnt lgkmcnt(0)')
    a('s_barrier')
    for j in range(13):
        a('ds_read_b128 %s, v7 offset:%d' % (V(64 + 4 * j, 4), 4096 * j))
    for j in range(13):
        a('s_add_u32 %s, %s, %d' % (sT0, sW, 4 * j))
        a('s_mul_i32 %s, %s, 52' % (sT1, sT0))
        a('s_lshr_b32 %s, %s, 8' % (sT1, sT1))
        a('s_mul_i32 %s, %s, 5' % (sT2, sT1))
        a('s_sub_u32 %s, %s, %s' % (sT2, sT0, sT2))
        a('s_mul_i32 %s, %s, %s' % (sT1, sT1, sX))
        a('s_lshl_b32 %s, %s, 10' % (sT2, sT2))
        a('s_add_u32 %s, %s, %s' % (sT1, sT1, sT2))
        a('s_add_u32 %s, %s, %s' % (sT1, sT1, sY))
        if j == 12:
            a('s_cmp_lt_u32 %s, 50' % sT0)
            a('s_cselect_b32 %s, %s, 0x%x' % (sT1, sT1, 0x80000000))
        a('s_waitcnt lgkmcnt(%d)' % (12 - j))
        a('buffer_store_dwordx4 %s, v1, %s, %s offen sc1' % (V(64 + 4 * j, 4), WS, sT1))
    signal(a, '0 offset:%d' % (D_A0 * 4))


def gemm(a, ntile, kps, src, bload):
    nd = -(-ntile * kps // 4)
    nst = 40 // kps
    BB, FB = 16, 16 + 16 * kps
    sSl, sM = 's47', 's48'

    def dma():
        ops = []
        for j in range(nd):
            if j % 4 == 0:
                ops.append(['s_add_u32 m0, %s, %s' % (sM, sSl) if j == 0 else 's_add_u32 m0, m0, 4096',
                            's_add_u32 %s, %s, %d' % (sT1, src, 1024 * j)])
            ops.append(['buffer_load_dwordx4 v3, %s, %s offen offset:%d sc1 lds' % (WS, sT1, 1024 * (j & 3))])
        ops.append(['s_add_u32 %s, %s, %d' % (src, src, ntile * kps * 1024),
                    's_add_u32 %s, %s, 0x8000' % (sSl, sSl), 's_and_b32 %s, %s, 0x1ffff' % (sSl, sSl)])
        return ops

    def frags(k):
        return ['ds_read_b128 %s, v8 offset:%d' % (V(FB + 4 * ntile * (k & 1) + 4 * t, 4), (k % kps * ntile + t) * 1024)
                for t in range(ntile)]
    a('s_mul_i32 %s, %s, %d' % (sM, sW, nd * 1024))
    a('v_add_u32 v3, %s, v1' % sM)
    a('v_mov_b32 v8, v1')
    a('s_mov_b32 %s, 0' % sSl)
    a('s_mov_b32 %s, 0' % sK)
    for s_ in range(3):
        for ops in [bload(BB + 4 * kps * s_ + 4 * k) for k in range(kps)] + dma():
            for x in ops:
                a(x)
    for r in range(16 * ntile):
        a('v_accvgpr_write_b32 %s, 0' % A(r))
    a('s_waitcnt vmcnt(%d)' % (2 * (nd + kps)))
    a('s_barrier')
    for x in frags(0):
        a(x)
    loop = a.label('ag')
    a(loop + ':')
    for par in range(4):
        side = [bload(BB + 4 * kps * ((par + 3) & 3) + 4 * k) for k in range(kps)] + dma()
        for k in range(kps):
            nxt = frags(k + 1)
            last = k == kps - 1
            a('s_waitcnt lgkmcnt(0)')
            for t in range(ntile):
                a('%s %s, %s, %s, %s' % (M32, A(16 * t, 16), V(FB + 4 * ntile * (k & 1) + 4 * t, 4),
                                         V(BB + 4 * kps * par + 4 * k, 4), A(16 * t, 16)))
                if not last:
                    a(nxt[t])
                    n = -(-len(side) // ((kps - 1 - k) * ntile - t))
                    for _ in range(n):
                        for x in side.pop(0):
                            a(x)
                elif t == 0:
                    assert not side
                    a('v_add_u32 v8, 0x8000, v8')
                    a('v_and_b32 v8, 0x1ffff, v8')
                    a('s_waitcnt vmcnt(%d)' % (2 * (nd + kps)))
                    a('s_barrier')
                    a(nxt[0])
                else:
                    a(nxt[t])
    a('s_add_u32 %s, %s, 4' % (sK, sK))
    a('s_cmp_lt_u32 %s, %d' % (sK, nst))
    a('s_cbranch_scc1 %s' % loop)
    a('s_waitcnt vmcnt(0) lgkmcnt(0)')
    a('s_barrier')


def features(a, acc0, dst, tmp):
    p, e = tmp, tmp + 20
    mx, mn, s1, s2 = (V(tmp + 40 + i) for i in range(4))
    for i in range(20):
        a('v_accvgpr_read_b32 %s, %s' % (V(p + i), A(acc0 + i)))
    a('v_max3_f32 %s, %s, %s, %s' % (mx, V(p), V(p + 1), V(p + 2)))
    a('v_min3_f32 %s, %s, %s, %s' % (mn, V(p), V(p + 1), V(p + 2)))
    for i in range(3, 19, 2):
        a('v_max3_f32 %s, %s, %s, %s' % (mx, mx, V(p + i), V(p + i + 1)))
        a('v_min3_f32 %s, %s, %s, %s' % (mn, mn, V(p + i), V(p + i + 1)))
    a('v_max_f32 %s, %s, %s' % (mx, mx, V(p + 19)))
    a('v_min_f32 %s, %s, %s' % (mn, mn, V(p + 19)))
    a('v_mul_f32 %s, %s, %s' % (mx, sL2E, mx))
    a('v_mul_f32 %s, %s, %s' % (mn, sL2E, mn))
    for i in range(20):
        a('v_fma_f32 %s, -%s, %s, %s' % (V(e + i), V(p + i), sL2E, mn))
        a('v_fma_f32 %s, %s, %s, -%s' % (V(p + i), V(p + i), sL2E, mx))
    for i in range(40):
        a('v_exp_f32 %s, %s' % (V(p + i), V(p + i)))
    for s_, b in ((s1, p), (s2, e)):
        a('v_add_f32 %s, %s, %s' % (s_, V(b), V(b + 1)))
        for i in range(2, 20):
            a('v_add_f32 %s, %s, %s' % (s_, s_, V(b + i)))
        a('v_rcp_f32 %s, %s' % (s_, s_))
    for s_, b in ((s1, p), (s2, e)):
        for i in range(20):
            a('v_mul_f32 %s, %s, %s' % (V(b + i), V(b + i), s_))
    for i in range(20):
        a('v_cvt_pk_bf16_f32 %s, %s, %s' % (V(dst + i), V(p + 2 * i), V(p + 2 * i + 1)))


L_PHI, PHI_ROW = 0, 640
L_V, V_ROW = 128 * 640, 400


def gen_a(a, opt):
    amap = {0: {12: 12, 13: 13, 14: 14, 15: 15}, 1: {1: 12, 2: 13, 12: 14, 3: 15}, 2: {13: 12, 4: 13, 5: 14, 14: 15}}[opt.get('amap', 0)]
    st = lambda i: wstamp(a, amap[i]) if opt.get('wstamps') and i in amap else None
    a('s_sub_u32 %s, %s, 6' % (sT0, sGRP))
    a('s_lshl_b32 %s, %s, 5' % (sA, sT0))
    a('s_add_u32 %s, %s, %s' % (sA, sA, sIDX))
    a('s_lshr_b32 %s, %s, 4' % (sHG, sA))
    a('s_and_b32 %s, %s, 15' % (sTB, sA))
    a('s_mov_b32 %s, 0x%x' % (sL2E, LOG2E))
    a('v_mov_b32 v2, 0x80000000')
    gen_a0(a)
    st(1)
    srd(a, 12, 64, 2621440)
    a('v_lshlrev_b32 v1, 4, v0')
    a('v_and_b32 v4, 31, v0')
    a('v_lshrrev_b32 v5, 5, v0')
    a('v_mul_u32_u24 v6, 1280, v4')
    a('v_mul_u32_u24 v7, 160, v5')
    a('v_add_u32 v6, v6, v7')
    a('s_lshl_b32 %s, %s, 2' % (sT0, sTB))
    a('s_add_u32 %s, %s, %s' % (sT0, sT0, sW))
    a('s_mul_i32 %s, %s, %d' % (sX, sT0, 32 * 1280))
    a('s_mov_b32 %s, 0' % sY)
    a('s_mul_i32 %s, %s, 614400' % (sT0, sHG))
    a('s_add_u32 s44, %s, 0x%x' % (sT0, AW))
    wait_dbg(a, [(D_A0, 64)])
    st(2)

    def xload(reg):
        return ['buffer_load_dwordx4 %s, v6, s[12:15], %s offen' % (V(reg, 4), sX),
                's_add_u32 %s, %s, 16' % (sX, sX), 's_add_u32 %s, %s, 1' % (sY, sY), 's_cmp_eq_u32 %s, 10' % sY,
                's_cselect_b32 %s, 160, 0' % sT0, 's_cselect_b32 %s, 0, %s' % (sY, sY),
                's_add_u32 %s, %s, %s' % (sX, sX, sT0)]
    gemm(a, 15, 2, 's44', xload)
    st(12)
    a('s_lshl_b32 %s, %s, 5' % (sT0, sW))
    a('v_add_u32 v8, %s, v4' % sT0)
    a('v_mul_u32_u24 v9, %d, v8' % PHI_ROW)
    a('v_mul_u32_u24 v7, 320, v5')
    a('v_add_u32 v9, v9, v7')
    a('v_mul_u32_u24 v10, %d, v8' % V_ROW)
    a('v_mul_u32_u24 v7, 192, v5')
    a('v_add3_u32 v10, v10, v7, %s' % sBIGset(a, L_V))
    for m in range(4):
        features(a, 80 + 20 * m, 16, 40)
        for j in range(5):
            a('ds_write_b128 v9, %s offset:%d' % (V(16 + 4 * j, 4), 80 * m + 16 * j))
        for i in range(20):
            a('v_accvgpr_read_b32 %s, %s' % (V(40 + i), A(160 + 20 * m + i)))
        for i in range(10):
            a('v_cvt_pk_bf16_f32 %s, %s, %s' % (V(64 + i), V(40 + 2 * i), V(41 + 2 * i)))
        a('v_mov_b32 v74, 0x3f80')
        a('v_mov_b32 v75, 0')
        for j in range(3):
            a('ds_write_b128 v10, %s offset:%d' % (V(64 + 4 * j, 4), 48 * m + 16 * j))
    a('s_waitcnt lgkmcnt(0)')
    a('s_barrier')
    st(3)
    a('v_lshrrev_b32 v7, 4, v0')
    a('v_bfe_u32 v8, v0, 2, 2')
    a('v_lshl_add_u32 v8, v7, 3, v8')
    a('v_and_b32 v11, 3, v0')
    a('s_mul_i32 %s, %s, 160' % (sT0, sW))
    a('v_mul_u32_u24 v12, %d, v8' % PHI_ROW)
    a('v_add_u32 v12, %s, v12' % sT0)
    a('v_and_b32 v14, 1, v0')
    a('v_lshl_add_u32 v13, v14, 3, v12')
    a('v_lshl_add_u32 v12, v11, 3, v12')
    a('s_mul_i32 %s, %s, 96' % (sT0, sW))
    a('s_add_u32 %s, %s, %d' % (sT0, sT0, L_V))
    a('v_mul_u32_u24 v15, %d, v8' % V_ROW)
    a('v_add_u32 v15, %s, v15' % sT0)
    a('v_lshl_add_u32 v14, v14, 3, v15')
    a('v_lshl_add_u32 v15, v11, 3, v15')
    a('s_lshl_b32 %s, %s, 4' % (sT0, sHG))
    a('s_add_u32 %s, %s, %s' % (sT0, sT0, sTB))
    a('s_mul_i32 %s, %s, 49152' % (sT0, sT0))
    a('s_mul_i32 %s, %s, 12288' % (sT1, sW))
    a('s_add_u32 %s, %s, %s' % (sT0, sT0, sT1))
    a('s_add_u32 %s, %s, 0x%x' % (sX, sT0, KP))
    for hh in range(2):
        for kq in range(4):
            for ft in range(3):
                for s_ in range(2):
                    a('ds_read_b64_tr_b16 %s, %s offset:%d' % (
                        V(16 + 4 * ft + 2 * s_, 2), 'v13' if ft == 2 else 'v12',
                        (32 * kq + 4 * s_) * PHI_ROW + 80 * hh + 32 * ft))
            for dt in range(2):
                for s_ in range(2):
                    a('ds_read_b64_tr_b16 %s, %s offset:%d' % (
                        V(28 + 4 * dt + 2 * s_, 2), 'v14' if dt else 'v15',
                        (32 * kq + 4 * s_) * V_ROW + 48 * hh + 32 * dt))
            a('s_waitcnt lgkmcnt(0)')
            for ft in range(3):
                for dt in range(2):
                    D = V(40 + 24 * hh + 8 * ft + 4 * dt, 4)
                    a('%s %s, %s, %s, %s' % (M16, D, V(16 + 4 * ft, 4), V(28 + 4 * dt, 4), '0' if kq == 0 else D))
    for t in range(12):
        a('buffer_store_dwordx4 %s, v1, %s, %s offen offset:%d sc1' % (V(40 + 4 * t, 4), WS, sX, 1024 * (t & 3)))
        if t & 3 == 3:
            a('s_add_u32 %s, %s, 4096' % (sX, sX))
    a('s_lshl_b32 %s, %s, 2' % (sT1, sHG))
    a('s_add_u32 %s, %s, %d' % (sT1, sT1, D_A1 * 4))
    signal(a, sT1)
    for m in range(4):
        features(a, 20 * m, 160 + 20 * m, 40)
    a('s_add_u32 %s, %s, %d' % (sT2, sHG, D_A1))
    wait_dbg(a, [(sT2, 16)])
    st(13)
    nored = a.label('nored')
    a('s_cmp_eq_u32 %s, 3' % sW)
    a('s_cbranch_scc1 %s' % nored)
    a('s_mul_i32 %s, %s, 3' % (sT0, sTB))
    a('s_add_u32 %s, %s, %s' % (sT0, sT0, sW))
    a('s_mul_i32 %s, %s, %d' % (sT1, sHG, 16 * 49152))
    a('s_lshl_b32 %s, %s, 10' % (sT2, sT0))
    a('s_add_u32 %s, %s, %s' % (sT1, sT1, sT2))
    a('s_add_u32 %s, %s, 0x%x' % (sX, sT1, KP))
    for j in range(16):
        a('buffer_load_dwordx4 %s, v1, %s, %s offen sc1' % (V(16 + 4 * j, 4), WS, sX))
        a('s_add_u32 %s, %s, 49152' % (sX, sX))
    a('s_mul_i32 %s, %s, 43' % (sT1, sT0))
    a('s_lshr_b32 %s, %s, 8' % (sT1, sT1))
    a('s_mul_i32 %s, %s, 6' % (sT2, sT1))
    a('s_sub_u32 %s, %s, %s' % (sT0, sT0, sT2))
    a('s_lshr_b32 %s, %s, 1' % (sT2, sT0))
    a('s_and_b32 %s, %s, 1' % (sT0, sT0))
    a('s_and_b32 %s, %s, 3' % (sT3, sT1))
    a('s_lshl_b32 %s, %s, 1' % (sT3, sT3))
    a('s_add_u32 %s, %s, %s' % (sT3, sT3, sT0))
    a('s_mul_i32 %s, %s, 5120' % (sT3, sT3))
    a('s_lshr_b32 %s, %s, 2' % (sT1, sT1))
    a('s_mul_i32 %s, %s, %d' % (sT1, sT1, 36 * 16))
    a('s_add_u32 %s, %s, %s' % (sT3, sT3, sT1))
    a('s_mul_i32 %s, %s, 40960' % (sT1, sHG))
    a('s_add_u32 %s, %s, %s' % (sT3, sT3, sT1))
    a('s_add_u32 %s, %s, 0x%x' % (sT3, sT3, KF))
    a('s_lshl_b32 %s, %s, 1' % (sT2, sT2))
    a('v_lshrrev_b32 v8, 1, v7')
    a('v_add_u32 v8, %s, v8' % sT2)
    a('v_cmp_gt_u32 vcc, 5, v8')
    a('v_lshlrev_b32 v8, 10, v8')
    a('v_bfe_u32 v11, v0, 2, 2')
    a('v_lshl_add_u32 v8, v11, 7, v8')
    a('v_and_b32 v11, 3, v0')
    a('v_lshl_add_u32 v8, v11, 4, v8')
    a('v_and_b32 v11, 1, v7')
    a('v_lshl_add_u32 v8, v11, 3, v8')
    a('v_mov_b32 v11, 0x80000000')
    a('v_cndmask_b32 v8, v11, v8, vcc')
    for j in range(1, 16):
        a('s_waitcnt vmcnt(%d)' % (15 - j))
        for r in range(4):
            a('v_add_f32 %s, %s, %s' % (V(16 + r), V(16 + r), V(16 + 4 * j + r)))
    a('v_cvt_pk_bf16_f32 v16, v16, v17')
    a('v_cvt_pk_bf16_f32 v17, v18, v19')
    a('buffer_store_dwordx2 v[16:17], v8, %s, %s offen sc1' % (WS, sT3))
    a(nored + ':')
    a('s_lshl_b32 %s, %s, 2' % (sT1, sHG))
    a('s_add_u32 %s, %s, %d' % (sT1, sT1, D_A2 * 4))
    signal(a, sT1)
    a('v_bfe_u32 v8, v0, 2, 1')
    a('v_cmp_eq_u32 vcc, v8, v5')
    a('v_mov_b32 v11, 0x80000000')
    a('v_cndmask_b32 v8, v11, v1, vcc')
    a('s_mul_i32 %s, %s, 40960' % (sX, sHG))
    a('s_add_u32 %s, %s, 0x%x' % (sX, sX, KF))
    a('s_mov_b32 %s, 0x358637bd' % sY)
    a('s_add_u32 %s, %s, %d' % (sT2, sHG, D_A2))
    wait_dbg(a, [(sT2, 16)])
    st(4)
    for m in range(4):
        for j in range(10):
            a('buffer_load_dwordx4 %s, v8, %s, %s offen sc1' % (V(16 + 4 * j, 4), WS, sX))
            a('s_add_u32 %s, %s, 1024' % (sX, sX))
        for j in range(10):
            a('s_waitcnt vmcnt(%d)' % (9 - j))
            D = V(64 + 16 * (j // 5), 16)
            a('%s %s, %s, %s, %s' % (M32, D, V(16 + 4 * j, 4), V(160 + 20 * m + 4 * (j % 5), 4), '0' if j % 5 == 0 else D))
        a('v_add_f32 v84, %s, v84' % sY)
        a('v_rcp_f32 v84, v84')
        for i in range(20):
            a('v_mul_f32 %s, %s, v84' % (V(64 + i), V(64 + i)))
        for i in range(10):
            a('v_cvt_pk_bf16_f32 %s, %s, %s' % (V(100 + 10 * m + i), V(64 + 2 * i), V(65 + 2 * i)))
    a('s_lshl_b32 %s, %s, 2' % (sT0, sTB))
    a('s_add_u32 %s, %s, %s' % (sT0, sT0, sW))
    a('s_mul_i32 %s, %s, 40960' % (sT0, sT0))
    a('s_add_u32 %s, %s, 0x%x' % (sP, sT0, OA))
    a('s_mul_i32 %s, %s, 10240' % (sT1, sHG))
    a('s_add_u32 %s, %s, %s' % (sX, sP, sT1))
    for u in range(10):
        a('buffer_store_dwordx4 %s, v1, %s, %s offen sc1' % (V(100 + 4 * u, 4), WS, sX))
        a('s_add_u32 %s, %s, 1024' % (sX, sX))
    st(5)
    skip = a.label('sig3')
    a('s_and_b32 %s, %s, 3' % (sH, sTB))
    a('s_lshl_b32 %s, %s, 3' % (sH, sH))
    a('s_lshr_b32 %s, %s, 2' % (sT2, sTB))
    a('s_add_u32 %s, %s, %d' % (sT2, sT2, D_A3))
    a('s_lshl_b32 %s, %s, 2' % (sT1, sT2))
    a('s_lshl_b32 %s, 1, %s' % (sT0, sH))
    a('s_waitcnt vmcnt(0)')
    a('s_barrier')
    a('s_cmp_lg_u32 %s, 0' % sW)
    a('s_cbranch_scc1 %s' % skip)
    a('s_mov_b64 exec, 1')
    a('v_mov_b32 v2, %s' % sT0)
    a('buffer_atomic_add v2, off, %s, %s sc1' % (DBG, sT1))
    a('s_mov_b64 exec, -1')
    a(skip + ':')
    again = a.label('w3')
    a('s_mov_b32 %s, 0' % sSpin)
    a(again + ':')
    a('s_sleep 4')
    a('buffer_load_dword v2, off, %s, %s sc1' % (DBG, sT1))
    spin_check(a)
    a('s_waitcnt vmcnt(0)')
    a('v_bfe_u32 v2, v2, %s, 8' % sH)
    a('v_cmp_ne_u32 vcc, 4, v2')
    a('s_cbranch_vccnz %s' % again)
    st(14)
    a('s_mul_i32 %s, %s, 204800' % (sT0, sHG))
    a('s_add_u32 s44, %s, 0x%x' % (sT0, AWO))

    def oload(reg):
        return ['buffer_load_dwordx4 %s, v1, %s, %s offen sc1' % (V(reg, 4), WS, sP), 's_add_u32 %s, %s, 1024' % (sP, sP)]
    gemm(a, 5, 2, 's44', oload)
    srd(a, 12, 86, 5242880)
    a('v_mul_u32_u24 v6, 2560, v4')
    a('v_mul_u32_u24 v7, 160, v5')
    a('v_add_u32 v6, v6, v7')
    a('s_lshl_b32 %s, %s, 2' % (sT0, sTB))
    a('s_add_u32 %s, %s, %s' % (sT0, sT0, sW))
    a('s_mul_i32 %s, %s, %d' % (sT0, sT0, 32 * 2560))
    a('s_mul_i32 %s, %s, 320' % (sT1, sHG))
    a('s_add_u32 %s, %s, %s' % (sT0, sT0, sT1))
    for u in range(10):
        b = 16 + 12 * (u & 3)
        for j in range(8):
            a('v_accvgpr_read_b32 %s, %s' % (V(b + 4 + j), A(8 * u + j)))
        for j in range(4):
            a('v_cvt_pk_bf16_f32 %s, %s, %s' % (V(b + j), V(b + 4 + 2 * j), V(b + 5 + 2 * j)))
        a('buffer_store_dwordx4 %s, v6, s[12:15], %s offen offset:%d' % (V(b, 4), sT0, 16 * u))
    st(15)
    a('s_branch L_end')


def sBIGset(a, val):
    a('s_mov_b32 %s, %d' % (sBIG, val))
    return sBIG
```

```python
import math
import struct
from layout import *
from chain import sW, sGRP, sIDX, sT0, sT1, sT2, sT3, sSpin, WS, DBG, srd, spin_check, rho, VQ
from workers import V, A, wait_dbg, wstamp, sJ

CBITS = struct.unpack('<I', struct.pack('<f', 128 ** -0.5 * math.log2(math.e)))[0]
sS, sH, sHG, sC, sO = 's33', 's34', 's35', 's36', 's37'


def poll(a, vaddr, soff, cmp_text, sleep):
    again, first = a.label('poll'), a.label('pollf')
    a('s_mov_b32 %s, 0' % sSpin)
    a('s_branch %s' % first)
    a(again + ':')
    a('s_sleep %d' % sleep)
    a(first + ':')
    a('buffer_load_dword v2, %s, %s, %s offen sc1' % (vaddr, WS, soff))
    spin_check(a)
    a('s_waitcnt vmcnt(0)')
    a(cmp_text)
    a('s_cbranch_vccnz %s' % again)


def gen_b2(a, opt):
    Q, K, VV, KM, VM = 16, 48, 80, 112, 128
    S00, S01, S11, S0 = 136, 140, 144, 148
    PX, PM, ONE, L, O = 156, 164, 172, 176, 184
    mf = lambda D, x, y, C: a('v_mfma_f32_16x16x32_bf16 %s, %s, %s, %s' % (V(D, 4), V(x, 4), V(y, 4), C))
    m16 = lambda D, x, y: a('v_mfma_f32_16x16x16_bf16 %s, %s, %s, %s' % (V(D, 4), V(x, 2), V(y, 2), V(D, 4)))
    a('L_b2:')
    a('s_sub_u32 %s, %s, 2' % (sT0, sGRP))
    a('s_mul_i32 %s, %s, 12' % (sT0, sT0))
    a('s_add_u32 %s, %s, %s' % (sT0, sT0, sIDX))
    a('s_sub_u32 %s, %s, 20' % (sT0, sT0))
    a('s_and_b32 %s, %s, 7' % (sHG, sT0))
    a('s_lshr_b32 %s, %s, 3' % (sS, sT0))
    a('s_lshl_b32 %s, %s, 2' % (sH, sHG))
    a('s_add_u32 %s, %s, %s' % (sH, sH, sW))
    a('s_mov_b32 %s, 0x%x' % (sC, CBITS))
    a('v_lshlrev_b32 v1, 4, v0')
    a('v_lshrrev_b32 v4, 4, v0')
    rho(a, 'v5', 'v6')
    a('v_lshl_add_u32 v5, v4, 3, v5')
    a('v_lshlrev_b32 v5, 4, v5')
    a('v_lshlrev_b32 v6, 3, v0')
    a('v_and_b32 v7, 1, v0')
    a('v_lshlrev_b32 v7, 12, v7')
    a('v_and_b32 v8, 15, v0')
    for r in range(4):
        a('v_lshl_add_u32 v9, v4, 2, %d' % r)
        a('v_cmp_le_u32 s[%d:%d], v9, v8' % (56 + 2 * r, 57 + 2 * r))
    a('v_mov_b32 v10, 0xff800000')
    for r in range(4):
        a('v_mov_b32 %s, 0x3f803f80' % V(ONE + r))
    for r in (PX + 2, PX + 3, PM + 1, PM + 2, PM + 5, PM + 6):
        a('v_mov_b32 %s, 0' % V(r))
    loop = a.label('b2loop')
    a(loop + ':')
    a('s_lshr_b32 %s, %s, 4' % (sT2, sS))
    a('s_add_u32 %s, %s, %d' % (sT3, sT2, D_Q))
    a('s_add_u32 %s, %s, %d' % (sT2, sT2, D_KV))
    a('s_bfe_u32 %s, %s, 0x20002' % (sT1, sS))
    a('s_lshl_b32 %s, %s, 3' % (sT1, sT1))
    a('s_or_b32 %s, %s, 0x80000' % (sT1, sT1))
    wait_dbg(a, [(sT2, 32, sT1), (sT3, 16, sT1)])
    a('s_lshl_b32 %s, %s, 5' % (sT0, sS))
    a('s_add_u32 %s, %s, %s' % (sT0, sT0, sH))
    a('s_lshl_b32 %s, %s, 12' % (sO, sT0))
    a('s_add_u32 %s, %s, 0x%x' % (sO, sO, KMVM))
    a('s_lshl_b32 %s, %s, 13' % (sT1, sT0))
    a('s_add_u32 %s, %s, 0x%x' % (sT1, sT1, QX))
    a('s_lshl_b32 %s, %s, 14' % (sT0, sT0))
    for base, reg in ((sT0, K), (sT1, Q), (None, VV)):
        if base is None:
            base = sT0
        for j in range(8):
            a('buffer_load_dwordx4 %s, v1, %s, %s offen offset:%d sc1' % (V(reg + 4 * j, 4), WS, base, 1024 * (j & 3)))
            if j & 3 == 3:
                a('s_add_u32 %s, %s, 4096' % (base, base))
    a('s_waitcnt vmcnt(8)')
    for D, kt, qt in ((S00, 0, 0), (S01, 0, 1), (S11, 1, 1)):
        for ks in range(4):
            mf(D, K + 16 * kt + 4 * ks, Q + 16 * qt + 4 * ks, '0' if ks == 0 else V(D, 4))
    a('s_lshl_b32 %s, %s, 7' % (sT0, sH))
    a('s_add_u32 %s, %s, 0x%x' % (sT0, sT0, FLG))
    for D in (S00, S11):
        for r in range(4):
            a('v_cndmask_b32 %s, v10, %s, s[%d:%d]' % (V(D + r), V(D + r), 56 + 2 * r, 57 + 2 * r))
    a('v_max3_f32 v11, %s, %s, %s' % (V(S00), V(S00 + 1), V(S00 + 2)))
    a('v_max_f32 v11, v11, %s' % V(S00 + 3))
    a('v_max3_f32 v12, %s, %s, %s' % (V(S01), V(S01 + 1), V(S01 + 2)))
    a('v_max3_f32 v12, v12, %s, %s' % (V(S01 + 3), V(S11)))
    a('v_max3_f32 v12, v12, %s, %s' % (V(S11 + 1), V(S11 + 2)))
    a('v_max_f32 v12, v12, %s' % V(S11 + 3))
    poll(a, 'v7', sT0, 'v_cmp_ge_u32 vcc, %s, v2' % sS, 2)
    for ks in range(4):
        a('buffer_load_dwordx4 %s, v5, %s, %s offen offset:%d sc1' % (V(KM + 4 * ks, 4), WS, sO, 512 * ks))
    for p in range(4):
        a('buffer_load_dwordx2 %s, v6, %s, %s offen offset:%d sc1' % (V(VM + 2 * p, 2), WS, sO, 2048 + 512 * p))
    for ks in range(4):
        a('s_waitcnt vmcnt(%d)' % (7 - ks))
        for qt in range(2):
            mf(S0 + 4 * qt, KM + 4 * ks, Q + 16 * qt + 4 * ks, '0' if ks == 0 else V(S0 + 4 * qt, 4))
    a('s_lshl_b32 %s, %s, 18' % (sT0, sS))
    a('s_lshl_b32 %s, %s, 12' % (sT1, sH))
    a('s_add_u32 %s, %s, %s' % (sT0, sT0, sT1))
    a('s_add_u32 %s, %s, 0x%x' % (sT0, sT0, OB))
    a('s_add_u32 %s, %s, 0x20000' % (sT1, sT0))
    for qt in range(2):
        a('v_max3_f32 %s, %s, %s, %s' % (V(11 + qt), V(11 + qt), V(S0 + 4 * qt), V(S0 + 4 * qt + 1)))
    for op in ('v_permlane32_swap_b32', 'v_permlane16_swap_b32'):
        for qt in range(2):
            a('v_mov_b32 %s, %s' % (V(13 + qt), V(11 + qt)))
        for qt in range(2):
            a('%s %s, %s' % (op, V(11 + qt), V(13 + qt)))
        for qt in range(2):
            a('v_max_f32 %s, %s, %s' % (V(11 + qt), V(11 + qt), V(13 + qt)))
    for qt in range(2):
        a('v_mul_f32 %s, %s, %s' % (V(11 + qt), sC, V(11 + qt)))
    vals = [(S00 + r, 0) for r in range(4)] + [(S0, 0), (S0 + 1, 0)] + \
           [(S01 + r, 1) for r in range(8)] + [(S0 + 4, 1), (S0 + 5, 1)]
    for r, qt in vals:
        a('v_fma_f32 %s, %s, %s, -%s' % (V(r), V(r), sC, V(11 + qt)))
    for r, qt in vals:
        a('v_exp_f32 %s, %s' % (V(r), V(r)))
    cv = lambda d, x: a('v_cvt_pk_bf16_f32 %s, %s, %s' % (V(d), V(x), V(x + 1)))
    cv(PX, S00)
    cv(PX + 1, S00 + 2)
    for j in range(4):
        cv(PX + 4 + j, S01 + 2 * j)
    for qt in range(2):
        cv(PM + 4 * qt, S0 + 4 * qt)
        cv(PM + 4 * qt + 3, S0 + 4 * qt)
    a('s_waitcnt vmcnt(0)')
    for qt in range(2):
        mf(L + 4 * qt, ONE, PX + 4 * qt, '0')
        for et in range(8):
            mf(O + 32 * qt + 4 * et, VV + 4 * et, PX + 4 * qt, '0')
        m16(L + 4 * qt, ONE, PM + 4 * qt)
        for et in range(8):
            m16(O + 32 * qt + 4 * et, VM + 2 * (et & 3), PM + 4 * qt + 2 * (et >> 2))
    for qt in range(2):
        a('v_rcp_f32 %s, %s' % (V(L + 4 * qt), V(L + 4 * qt)))
    for qt in range(2):
        for p in range(4):
            D = O + 32 * qt + 8 * p
            for r in range(8):
                a('v_mul_f32 %s, %s, %s' % (V(D + r), V(D + r), V(L + 4 * qt)))
            for j in range(4):
                cv(D + j, D + 2 * j)
            a('buffer_store_dwordx4 %s, v1, %s, %s offen offset:%d sc1' % (V(D, 4), WS, (sT0, sT1)[qt], 1024 * p))
    a('s_lshl_b32 %s, %s, 8' % (sT0, sS))
    a('s_lshl_b32 %s, %s, 5' % (sT1, sHG))
    a('s_add_u32 %s, %s, %s' % (sT0, sT0, sT1))
    a('s_add_u32 %s, %s, 0x%x' % (sT0, sT0, FLG2))
    a('s_waitcnt vmcnt(0)')
    a('s_barrier')
    nf = a.label('b2nf')
    a('s_cmp_lg_u32 %s, 0' % sW)
    a('s_cbranch_scc1 %s' % nf)
    a('buffer_store_dword v10, off, %s, %s sc1' % (WS, sT0))
    a(nf + ':')
    a('s_add_u32 %s, %s, 6' % (sS, sS))
    a('s_cmp_lt_u32 %s, 64' % sS)
    a('s_cbranch_scc1 %s' % loop)
    if opt.get('wstamps'):
        wstamp(a, 12)
    a('s_branch L_end')


def gen_b3(a, opt):
    OBF, ACC = 16, 144
    sHS, sPar, sM0 = 's33', 's34', 's35'
    a('L_b3:')
    srd(a, 12, 82, 5242880)
    srd(a, 16, 86, 5242880)
    a('v_lshrrev_b32 v4, 2, v0')
    a('v_mul_u32_u24 v4, 1280, v4')
    a('v_and_b32 v5, 3, v0')
    a('v_lshl_add_u32 v4, v5, 4, v4')
    a('s_mul_i32 %s, %s, %d' % (sT2, sW, 1024 * 1280))
    a('s_lshl_b32 %s, %s, 6' % (sT1, sIDX))
    a('s_add_u32 %s, %s, %s' % (sT2, sT2, sT1))
    a('s_lshl_b32 %s, %s, 15' % (sM0, sW))
    q = VQ(a)

    def issue(i):
        a('s_add_u32 m0, %s, %d' % (sM0, (i % 8) * 4096))
        for j in range(4):
            a('s_add_u32 %s, %s, 0x%x' % (sT0, sT2, (64 * i + 16 * j) * 1280 - 1024 * j))
            a('buffer_load_dwordx4 v4, s[12:15], %s offen offset:%d lds' % (sT0, 1024 * j))
        q.add(i, 4)
    for i in range(8):
        issue(i)
    a('v_lshrrev_b32 v6, 2, v0')
    a('v_lshlrev_b32 v6, 6, v6')
    a('v_lshl_add_u32 v6, v5, 4, v6')
    a('v_add_u32 v6, %s, v6' % sM0)
    a('v_lshlrev_b32 v1, 4, v0')
    for i in range(16):
        q.wait(i)
        for pp in range(2):
            for tau in range(2):
                for s_ in range(2):
                    r = 8 * (2 * i + pp) + 4 * tau + 2 * s_
                    a('ds_read_b64_tr_b16 %s, v6 offset:%d' % (
                        A(r, 2), (i % 8) * 4096 + pp * 2048 + s_ * 1024 + tau * 8))
        a('s_waitcnt lgkmcnt(0)')
        if i + 8 < 16:
            issue(i + 8)
    a('v_and_b32 v7, 1, v0')
    a('s_lshl_b32 %s, %s, 6' % (sT0, sW))
    a('v_lshl_add_u32 v7, v7, 5, %s' % sT0)
    a('v_and_b32 v8, 15, v0')
    a('v_mul_u32_u24 v8, 2560, v8')
    a('v_lshrrev_b32 v9, 4, v0')
    a('v_lshl_add_u32 v8, v9, 4, v8')
    a('s_lshl_b32 %s, %s, 6' % (sT0, sIDX))
    a('s_add_u32 %s, %s, 1280' % (sT0, sT0))
    a('v_add_u32 v8, %s, v8' % sT0)
    a('s_lshl_b32 %s, %s, 11' % (sT0, sW))
    a('v_add_u32 v9, %s, v1' % sT0)
    a('s_sub_u32 %s, %s, 2' % (sHS, sGRP))
    a('s_barrier')
    if opt.get('wstamps'):
        wstamp(a, 13)
    loop = a.label('b3loop')
    a(loop + ':')
    a('s_lshr_b32 %s, %s, 1' % (sT0, sHS))
    a('s_lshl_b32 %s, %s, 8' % (sT0, sT0))
    a('s_add_u32 %s, %s, 0x%x' % (sT0, sT0, FLG2))
    a('s_lshl_b32 %s, %s, 17' % (sT2, sHS))
    a('s_lshl_b32 %s, %s, 15' % (sT1, sW))
    a('s_add_u32 %s, %s, %s' % (sT2, sT2, sT1))
    a('s_add_u32 %s, %s, 0x%x' % (sT2, sT2, OB))
    poll(a, 'v7', sT0, 'v_cmp_eq_u32 vcc, 0, v2', 2)
    for p in range(32):
        a('buffer_load_dwordx4 %s, v1, %s, %s offen offset:%d sc1' % (V(OBF + 4 * p, 4), WS, sT2, 1024 * (p & 3)))
        if p & 3 == 3:
            a('s_add_u32 %s, %s, 4096' % (sT2, sT2))
    for p in range(32):
        a('s_waitcnt vmcnt(%d)' % (31 - p))
        for tau in range(2):
            D = V(ACC + 4 * tau, 4)
            a('v_mfma_f32_16x16x32_bf16 %s, %s, %s, %s' % (D, A(8 * p + 4 * tau, 4), V(OBF + 4 * p, 4), '0' if p == 0 else D))
    w0, nx = a.label('b3w0'), a.label('b3nx')
    a('s_mul_i32 %s, %s, %d' % (sT0, sHS, 16 * 2560))
    a('s_cmp_eq_u32 %s, 0' % sW)
    a('s_cbranch_scc1 %s' % w0)
    a('s_nop 7')
    a('ds_write_b128 v9, %s' % V(ACC, 4))
    a('ds_write_b128 v9, %s offset:1024' % V(ACC + 4, 4))
    a('s_waitcnt lgkmcnt(0)')
    a('s_barrier')
    a('s_branch %s' % nx)
    a(w0 + ':')
    a('s_barrier')
    for j in range(6):
        a('ds_read_b128 %s, v9 offset:%d' % (V(OBF + 4 * j, 4), 2048 + 1024 * j))
    for w in range(3):
        a('s_waitcnt lgkmcnt(%d)' % (4 - 2 * w))
        for r in range(8):
            a('v_add_f32 %s, %s, %s' % (V(ACC + r), V(ACC + r), V(OBF + 8 * w + r)))
    for j in range(4):
        a('v_cvt_pk_bf16_f32 %s, %s, %s' % (V(ACC + j), V(ACC + 2 * j), V(ACC + 2 * j + 1)))
    a('buffer_store_dwordx4 %s, v8, s[16:19], %s offen' % (V(ACC, 4), sT0))
    a(nx + ':')
    a('v_xor_b32 v9, 0x2000, v9')
    a('s_add_u32 %s, %s, 4' % (sHS, sHS))
    a('s_cmp_lt_u32 %s, 128' % sHS)
    a('s_cbranch_scc1 %s' % loop)
    if opt.get('wstamps'):
        wstamp(a, 14)
    a('s_branch L_end')


def gen_b23(a, opt):
    a('s_cmp_ge_u32 %s, 6' % sGRP)
    a('s_cbranch_scc1 L_parta')
    a('s_cmp_ge_u32 %s, 20' % sIDX)
    a('s_cbranch_scc1 L_b2')
    gen_b3(a, opt)
    gen_b2(a, opt)
    a('L_parta:')
    if opt.get('noa'):
        a('s_branch L_end')
    else:
        import apart
        apart.gen_a(a, opt)
```

```python
from layout import *

L_IMG = 0
L_QT = L_IMG
L_KT = 10240
RP = 288
L_OI = 14336
L_KX = 16384
L_W = 32768
UB = 0

SPIN = 1 << 17


def T(i, n=1):
    return 'v%d' % (16 + i) if n == 1 else 'v[%d:%d]' % (16 + i, 16 + i + n - 1)


REG_TILES = [('Q', c) for c in range(9)] + [('K', c) for c in range(10)] + [('V', c) for c in range(5, 10)] + \
            [('O', 0), ('O', 1), ('O', 2)]
LDS_TILES = [('V', c) for c in range(5)] + [('Q', 9), ('O', 3), ('O', 4)]
TILES = REG_TILES + LDS_TILES


def tile_reg(tile):
    i = REG_TILES.index(tile)
    return ('a', 16 * i) if i < 16 else ('v', 80 + 16 * (i - 16))


def slot(tile, half):
    f, b = tile_reg(tile)
    b += 8 * half
    return '%s[%d:%d]' % (f, b, b + 7)


def lds_off(tile, half):
    pos = TILES.index(tile) % 8
    return pos * 16384 + half * 2048


class VQ:
    def __init__(self, a):
        self.a, self.q = a, []

    def add(self, tag, n=1):
        self.q += [tag] * n
        assert len(self.q) <= 63, len(self.q)

    def wait(self, tag):
        last = max(i for i, t in enumerate(self.q) if t == tag)
        n = len(self.q) - 1 - last
        self.a('s_waitcnt vmcnt(%d)' % n)
        self.q = self.q[last + 1:]


sW, sGRP, sIDX, sSAFE = 's28', 's29', 's30', 's31'
sS, sMemL, sMemRin, sPubL, sPubR = 's32', 's33', 's34', 's35', 's36'
sP = ['s37', 's38', 's39', 's40', 's41']
sOwn0, sOwn1, sVx, sKxN, sVm0, sKM, sFlag, sOwner, sC, sSpin = ['s%d' % i for i in range(42, 52)]
sT0, sT1, sT2, sT3 = 's52', 's53', 's54', 's55'
sWarm, sW16, sN8 = 's56', 's57', 's[58:59]'
sChk = 's97'
sLine = 's96'
sM0N = 's60'
sSig = 's61'
sVM = 's62'
sRetry = 's63'
WS, DBG = 's[4:7]', 's[8:11]'


def srd(a, d, p, nbytes):
    a('s_mov_b32 s%d, s%d' % (d, p))
    a('s_and_b32 s%d, s%d, 0xffff' % (d + 1, p + 1))
    a('s_mov_b32 s%d, 0x%x' % (d + 2, nbytes))
    a('s_mov_b32 s%d, 0x20000' % (d + 3))


sCens = 's27'


def census(a):
    skip = a.label('cens')
    a('s_or_b32 %s, %s, %s' % (sT0, sW, sCens))
    a('s_mov_b32 %s, 1' % sCens)
    a('s_cmp_lg_u32 %s, 0' % sT0)
    a('s_cbranch_scc1 %s' % skip)
    a('s_lshl_b32 %s, 1, %s' % (sT0, sIDX))
    a('s_lshl_b32 %s, %s, 3' % (sT1, sGRP))
    a('s_cmp_lt_u32 %s, 8' % sGRP)
    a('s_cselect_b32 %s, %s, 0' % (sT0, sT0))
    a('s_cselect_b32 %s, %s, 0' % (sT1, sT1))
    a('s_mov_b64 exec, 1')
    a('v_mov_b32 v14, 1')
    a('v_mov_b32 v15, %s' % sT0)
    a('buffer_atomic_add_x2 v[14:15], off, %s, %s sc1' % (DBG, sT1))
    a('s_mov_b64 exec, -1')
    a(skip + ':')


def verdict(a, vreg):
    ok, again = a.label('vok'), a.label('vagain')
    a('s_mov_b32 %s, 0' % sSpin)
    a(again + ':')
    a('v_cmp_eq_u32 vcc, -1, %s' % vreg)
    a('s_and_b32 %s, vcc_lo, 0xaaaa' % sT0)
    a('s_cmp_eq_u32 %s, 0xaaaa' % sT0)
    a('s_cbranch_scc1 %s' % ok)
    a('s_mov_b32 %s, 0' % sT0)
    for i in range(8):
        a('v_readlane_b32 %s, %s, %d' % (sT1, vreg, 2 * i))
        a('s_add_u32 %s, %s, %s' % (sT0, sT0, sT1))
    a('s_cmp_lt_u32 %s, 256' % sT0)
    a('s_cbranch_scc1 %s' % (again + 'w'))
    a('s_cmp_lg_u32 %s, 0' % sSAFE)
    a('s_cbranch_scc1 %s' % ok)
    a('s_branch L_fallback')
    a(again + 'w:')
    a('s_add_u32 %s, %s, 1' % (sSpin, sSpin))
    a('s_cmp_gt_u32 %s, %d' % (sSpin, SPIN))
    a('s_cbranch_scc1 L_end')
    a('v_lshlrev_b32 %s, 2, v0' % vreg)
    a('buffer_load_dword %s, %s, %s, 0 offen sc1' % (vreg, vreg, DBG))
    a('s_waitcnt vmcnt(0)')
    a('s_branch %s' % again)
    a(ok + ':')


def rho(a, dst, tmp):
    a('v_bfe_u32 %s, v0, 2, 2' % tmp)
    a('v_and_b32 %s, 1, v0' % dst)
    a('v_lshl_add_u32 %s, %s, 1, %s' % (dst, tmp, dst))


def spin_check(a):
    a('s_add_u32 %s, %s, 1' % (sSpin, sSpin))
    a('s_cmp_gt_u32 %s, %d' % (sSpin, SPIN))
    a('s_cbranch_scc1 L_end')


def gen_chain(a, opt):
    stamps = opt.get('stamps')
    a('L_chain:')
    if stamps:
        a('s_memrealtime s[24:25]')
    srd(a, 12, 76, 5242880)
    srd(a, 16, 78, 5242880)
    srd(a, 20, 80, 5242880)
    srd(a, 92, 82, 5242880)
    SRD = {'Q': 's[12:15]', 'K': 's[16:19]', 'V': 's[20:23]', 'O': 's[92:95]'}
    vWq, vWo, vT, vTo = T(40), T(42), T(44), T(46)
    t0, t1, t2 = T(50), T(51), T(52)
    T41, T43, T45, T47 = T(41), T(43), T(45), T(47)
    a('v_lshrrev_b32 %s, 5, v0' % t0)
    a('v_bfe_u32 %s, v0, 4, 1' % t1)
    a('v_lshl_add_u32 %s, %s, 3, %s' % (t0, t0, t1))
    a('v_lshlrev_b32 %s, 13, %s' % (t0, t0))
    a('s_lshl_b32 %s, %s, 8' % (sT0, sIDX))
    a('s_lshl_b32 %s, %s, 17' % (sT1, sW))
    a('s_add_u32 %s, %s, %s' % (sT0, sT0, sT1))
    a('v_lshrrev_b32 %s, 4, v0' % t1)
    a('v_and_b32 %s, 15, v0' % t2)
    for p, dst in enumerate((vWq, T41)):
        a('v_add_u32 %s, %d, %s' % (dst, 4 * p, t1))
        a('v_lshlrev_b32 %s, 1, %s' % (dst, dst))
        a('v_xor_b32 %s, %s, %s' % (dst, dst, t2))
        a('v_lshl_add_u32 %s, %s, 4, %s' % (dst, dst, t0))
        a('v_add_u32 %s, %s, %s' % (dst, sT0, dst))
    a('s_mul_i32 %s, %s, %d' % (sT0, sIDX, 128 * 1280))
    a('s_mul_i32 %s, %s, 640' % (sT1, sGRP))
    a('s_add_u32 %s, %s, %s' % (sT0, sT0, sT1))
    a('s_mul_i32 %s, %s, %d' % (sT1, sW, 32 * 1280))
    a('s_add_u32 %s, %s, %s' % (sT0, sT0, sT1))
    a('v_bfe_u32 %s, v0, 4, 1' % t0)
    a('v_lshlrev_b32 %s, 3, %s' % (t1, t0))
    a('v_lshrrev_b32 %s, 5, v0' % t2)
    a('v_lshl_add_u32 %s, %s, 1, %s' % (t1, t2, t1))
    a('v_bfe_u32 %s, v0, 3, 1' % t2)
    a('v_add_u32 %s, %s, %s' % (t1, t1, t2))
    a('v_mul_u32_u24 %s, 1280, %s' % (t1, t1))
    a('v_and_b32 %s, 7, v0' % t2)
    for p, dst in enumerate((vWo, T43)):
        a('v_add_u32 %s, %d, %s' % (dst, 2 * p, t0))
        a('v_lshlrev_b32 %s, 1, %s' % (dst, dst))
        a('v_xor_b32 %s, %s, %s' % (dst, dst, t2))
        a('v_lshl_add_u32 %s, %s, 4, %s' % (dst, dst, t1))
        a('v_add_u32 %s, %s, %s' % (dst, sT0, dst))
    a('s_mul_i32 %s, %s, %d' % (sSig, sGRP, 5 * 524288))
    a('s_lshl_b32 %s, %s, 12' % (sM0N, sW))
    a('s_add_u32 %s, %s, 0x%x' % (sM0N, sM0N, L_W))

    q = VQ(a)

    def issue(i):
        tile = TILES[i]
        k = tile[0]
        a('s_add_u32 m0, %s, %d' % (sM0N, (i % 8) * 16384))
        for j in range(4):
            if k in 'QKV':
                c = tile[1]
                lit = c * 524288 + j * (2 * 8192 - 1024)
                if c < 5:
                    a('s_add_u32 %s, %s, 0x%x' % (sT0, sSig, lit))
                else:
                    a('s_sub_u32 %s, 0x%x, %s' % (sT0, lit, sSig))
                v = (vWq, T41)[j >> 1]
            else:
                a('s_mov_b32 %s, 0x%x' % (sT0, (16 * (j >> 1) + 4 * (j & 1)) * 1280 + tile[1] * 128 - 1024 * j))
                v = (vWo, T43)[j & 1]
            a('buffer_load_dwordx4 %s, %s, %s offen offset:%d lds' % (v, SRD[k], sT0, 1024 * j))
        q.add(i, 4)

    for i in range(7):
        issue(i)
    a('v_lshrrev_b32 %s, 4, v0' % t0)
    a('v_bfe_u32 %s, v0, 2, 2' % t1)
    a('v_lshl_add_u32 %s, %s, 3, %s' % (t2, t0, t1))
    a('v_and_b32 %s, 1, %s' % (t0, t0))
    a('v_lshl_add_u32 %s, %s, 2, %s' % (T(53), t0, t1))
    a('v_lshlrev_b32 %s, 1, %s' % (T(53), T(53)))
    a('v_bfe_u32 %s, v0, 1, 1' % T(54))
    a('v_and_b32 %s, 1, v0' % T(55))
    a('v_lshlrev_b32 %s, 3, %s' % (T(55), T(55)))
    a('s_lshl_b32 %s, %s, 2' % (sT0, sW))
    for t, dst in enumerate((vT, T45)):
        a('v_add3_u32 %s, %s, %d, %s' % (dst, T(54), 2 * t, sT0))
        a('v_xor_b32 %s, %s, %s' % (dst, dst, T(53)))
        a('v_lshl_add_u32 %s, %s, 4, %s' % (dst, dst, T(55)))
        a('v_lshl_add_u32 %s, %s, 8, %s' % (dst, t2, dst))
    a('v_lshrrev_b32 %s, 1, %s' % (t1, t1))
    a('v_lshl_add_u32 %s, %s, 1, %s' % (t1, t0, t1))
    a('v_xor_b32 %s, %s, %s' % (t1, sW, t1))
    a('v_lshl_add_u32 %s, %s, 1, %s' % (t1, t1, T(54)))
    a('v_lshl_add_u32 %s, %s, 4, %s' % (t1, t1, T(55)))
    a('v_lshl_add_u32 %s, %s, 7, %s' % (vTo, t2, t1))
    vTv, vTv1 = T(60), T(61)
    a('s_lshl_b32 %s, %s, 1' % (sT0, sW))
    for t, dst in enumerate((vTv, vTv1)):
        a('v_add3_u32 %s, %s, %d, %s' % (dst, T(54), 8 * t, sT0))
        a('v_xor_b32 %s, %s, %s' % (dst, dst, T(53)))
        a('v_lshl_add_u32 %s, %s, 4, %s' % (dst, dst, T(55)))
        a('v_lshl_add_u32 %s, %s, 8, %s' % (dst, t2, dst))
    FAR = {vT: T(56), T45: T(57), vTo: T(58), vTv: T(62), vTv1: T(63)}
    for near, far in FAR.items():
        a('v_add_u32 %s, 0x%x, %s' % (near, L_W, near))
        a('v_add_u32 %s, 0x10000, %s' % (far, near))
    a('v_lshlrev_b32 v1, 4, v0')
    a('v_add_u32 v2, %s, v1' % sM0N)
    a('v_add_u32 v3, 0x10000, v2')

    def trread(i, f, b):
        tile = TILES[i]
        pos = (i % 8) * 16384
        for half in range(2):
            for j, row in enumerate((0, 4, 32, 36)):
                if tile[0] == 'O':
                    v, o = vTo, pos + (row + 64 * half) * 128
                else:
                    v, o = ((vTv, vTv1) if tile[0] == 'V' else (vT, T45))[half], pos + row * 256
                if o >= 65536:
                    v, o = FAR[v], o - 65536
                r = b + 8 * half + 2 * j
                a('ds_read_b64_tr_b16 %s[%d:%d], %s offset:%d' % (f, r, r + 1, v, o))

    NR = len(REG_TILES)
    for i in range(NR):
        q.wait(i)
        a('s_barrier')
        if i == 0:
            census(a)
        issue(i + 7)
        f, b = tile_reg(TILES[i])
        trread(i, f, b)
        a('s_waitcnt lgkmcnt(0)')
    srd(a, 12, 74, 10240)
    a('v_bfe_u32 %s, v0, 3, 1' % t0)
    a('v_and_b32 %s, 2, v0' % t1)
    a('v_lshl_add_u32 %s, %s, 2, %s' % (t0, t0, t1))
    a('v_bfe_u32 %s, v0, 2, 1' % t1)
    a('v_add_u32 %s, %s, %s' % (t0, t0, t1))
    a('v_mul_u32_u24 %s, 1280, %s' % (t0, t0))
    a('v_lshrrev_b32 %s, 4, v0' % t1)
    a('v_lshl_add_u32 %s, %s, 5, %s' % (t0, t1, t0))
    a('v_and_b32 %s, 1, v0' % t1)
    a('v_lshl_add_u32 %s, %s, 4, %s' % (t0, t1, t0))
    for j in range(3):
        skip = a.label('m0s')
        a('s_add_u32 %s, %s, %d' % (sT0, sW, 4 * j))
        if j == 2:
            a('s_and_b32 %s, %s, 9' % (sT0, sT0))
        a('s_lshl_b32 %s, %s, 10' % (sT1, sT0))
        a('s_add_u32 m0, %s, 0x%x' % (sT1, L_IMG))
        a('s_mul_i32 %s, %s, 5' % (sT1, sGRP))
        a('s_add_u32 %s, %s, %s' % (sT0, sT0, sT1))
        a('s_sub_u32 %s, %s, 10' % (sT1, sT0))
        a('s_cmp_ge_u32 %s, 10' % sT0)
        a('s_cselect_b32 %s, %s, %s' % (sT0, sT1, sT0))
        a('s_lshl_b32 %s, %s, 7' % (sT0, sT0))
        a('buffer_load_dwordx4 %s, s[12:15], %s offen lds' % (t0, sT0))
        q.add('mem0')
    for i in range(NR, len(TILES)):
        q.wait(i)
        a('s_barrier')
        if i == NR:
            issue(len(TILES) - 1)
        trread(i, 'v', 16)
        a('s_waitcnt lgkmcnt(0)')
        a('s_barrier')
        for j in range(4):
            o = (i % 8) * 16384 + j * 1024
            a('ds_write_b128 %s, %s offset:%d' % ('v2' if o < 65536 else 'v3', T(4 * j, 4), o & 65535))
    g, n = T(0), T(1)
    a('v_lshrrev_b32 %s, 4, v0' % g)
    a('v_and_b32 %s, 15, v0' % n)
    a('v_mov_b32 v4, 0x4444')
    a('v_mov_b32 %s, 0xeeee' % t0)
    a('v_and_b32 %s, 2, v0' % t1)
    a('v_cmp_ne_u32 vcc, 0, %s' % t1)
    a('v_cndmask_b32 v4, v4, %s, vcc' % t0)
    rh, gl, gh = T(2), T(3), T(4)
    rho(a, rh, t0)
    a('v_and_b32 %s, 1, %s' % (gl, g))
    a('v_lshrrev_b32 %s, 1, %s' % (gh, g))
    a('v_mul_u32_u24 v5, %d, %s' % (2 * RP, g))
    a('v_bfe_u32 %s, v0, 2, 1' % t0)
    a('v_lshl_add_u32 v5, %s, 4, v5' % t0)
    a('v_bfe_u32 %s, v0, 3, 1' % t0)
    a('v_lshl_add_u32 v5, %s, 3, v5' % t0)
    a('v_and_b32 %s, 3, v0' % t0)
    a('v_lshl_add_u32 v5, %s, 1, v5' % t0)
    a('s_lshl_b32 %s, %s, 6' % (sT0, sW))
    a('v_add_u32 v5, %s, v5' % sT0)
    a('v_mul_u32_u24 v6, %d, %s' % (RP, rh))
    a('v_lshl_add_u32 v6, %s, 4, v6' % g)
    a('s_lshl_b32 %s, %s, 8' % (sT0, sW))
    a('s_add_u32 %s, %s, 0x%x' % (sT0, sT0, L_OI))
    a('v_and_b32 %s, 13, v0' % t1)
    a('v_lshl_add_u32 %s, %s, 1, %s' % (t1, gh, t1))
    a('v_and_b32 %s, 2, v0' % t2)
    a('v_lshl_add_u32 %s, %s, 5, %s' % (t1, t2, t1))
    a('v_lshlrev_b32 %s, 4, %s' % (t1, t1))
    a('v_lshl_add_u32 v7, %s, 3, %s' % (gl, t1))
    a('v_add_u32 v7, %s, v7' % sT0)
    a('s_lshl_b32 %s, %s, 8' % (sT0, sIDX))
    a('s_lshl_b32 %s, %s, 13' % (sT1, sW))
    a('s_add_u32 %s, %s, %s' % (sT0, sT0, sT1))
    a('v_lshl_add_u32 v8, v0, 2, %s' % sT0)
    a('s_lshl_b32 %s, %s, 10' % (sT0, sW))
    a('v_add_u32 v11, %s, v1' % sT0)
    a('s_lshl_b32 %s, %s, 8' % (sT0, sW))
    a('s_add_u32 %s, %s, 4096' % (sT0, sT0))
    a('v_lshl_add_u32 v9, v0, 2, %s' % sT0)
    a('v_and_b32 %s, 8, v0' % t1)
    a('v_and_b32 %s, 1, v0' % t2)
    a('v_lshl_add_u32 %s, %s, 2, %s' % (t1, t2, t1))
    a('v_bfe_u32 %s, v0, 1, 2' % t2)
    a('v_add_u32 %s, %s, %s' % (t1, t1, t2))
    a('v_lshl_add_u32 %s, %s, 4, %s' % (t1, g, t1))
    a('v_lshlrev_b32 v10, 4, %s' % t1)
    a('s_mov_b32 %s, 0' % sS)
    a('s_lshl_b32 %s, %s, 19' % (sT1, sGRP))
    a('s_add_u32 %s, %s, 0x%x' % (sPubL, sT1, MEML + 8192))
    a('s_add_u32 %s, %s, 0x%x' % (sMemL, sT1, MEML))
    for t in range(5):
        a('s_add_u32 %s, %s, 0x%x' % (sP[t], sT1, PART + t * 32768))
    a('s_add_u32 %s, %s, 0x%x' % (sOwn0, sT1, PART))
    a('s_add_u32 %s, %s, 0x%x' % (sOwn1, sT1, PART + 4096))
    a('s_lshl_b32 %s, %s, 20' % (sT1, sGRP))
    a('s_add_u32 %s, %s, 0x%x' % (sPubR, sT1, MEMR + 16384))
    a('s_xor_b32 %s, %s, 0x100000' % (sT1, sT1))
    a('s_add_u32 %s, %s, 0x%x' % (sMemRin, sT1, MEMR))
    a('s_lshl_b32 %s, %s, 14' % (sKxN, sIDX))
    a('s_lshl_b32 %s, %s, 11' % (sT2, sW))
    a('s_add_u32 %s, %s, 8192' % (sT2, sT2))
    a('s_add_u32 %s, %s, %s' % (sVx, sKxN, sT2))
    a('s_add_u32 %s, %s, 0x%x' % (sVm0, sT2, L_KX))
    a('s_lshl_b32 %s, %s, 12' % (sT2, sW))
    a('s_add_u32 %s, %s, %s' % (sT2, sT2, sKxN))
    a('s_add_u32 %s, %s, 0x80000' % (sWarm, sT2))
    a('s_lshl_b32 %s, %s, 12' % (sKM, sIDX))
    a('s_lshl_b32 %s, %s, 11' % (sT1, sGRP))
    a('s_add_u32 %s, %s, %s' % (sKM, sKM, sT1))
    a('s_lshl_b32 %s, %s, 9' % (sT1, sW))
    a('s_add_u32 %s, %s, %s' % (sKM, sKM, sT1))
    a('s_add_u32 %s, %s, 0x%x' % (sKM, sKM, KMVM - 0x20000))
    a('s_and_b32 %s, %s, 7' % (sT1, sIDX))
    a('s_add_u32 %s, %s, 32' % (sT1, sT1))
    a('s_bitcmp1_b32 %s, 0' % sW)
    a('s_cselect_b32 %s, %s, %s' % (sT1, sT1, sIDX))
    a('s_lshl_b32 %s, %s, 7' % (sLine, sT1))
    a('s_lshl_b32 %s, %s, 5' % (sT1, sGRP))
    a('s_add_u32 %s, %s, %s' % (sT1, sT1, sIDX))
    a('s_lshl_b32 %s, %s, 7' % (sT1, sT1))
    a('s_add_u32 %s, %s, 0x%x' % (sFlag, sT1, FLG))
    import struct
    import math
    cbits = struct.unpack('<I', struct.pack('<f', 128 ** -0.5 * math.log2(math.e)))[0]
    a('s_mov_b32 %s, 0x%x' % (sC, cbits))
    a('s_mov_b32 s58, 0xcccccccc')
    a('s_mov_b32 s59, 0xcccccccc')
    a('s_mov_b32 %s, 0' % sRetry)
    if opt.get('acc'):
        for k in list(range(64, 86)) + [20, 21]:
            a('s_mov_b32 s%d, 0' % k)
    a('s_lshl_b32 %s, %s, 4' % (sW16, sW))
    a('s_sub_u32 %s, 3, %s' % (sT1, sW))
    a('s_lshl_b32 %s, %s, 5' % (sT1, sT1))
    a('s_add_u32 %s, %s, %s' % (sT1, sT1, sIDX))
    a('s_cmp_lt_u32 %s, 40' % sT1)
    a('s_cselect_b32 %s, 1, 0' % sOwner)
    a('s_cselect_b32 %s, %s, 0' % (sT1, sT1))
    a('s_and_b32 %s, %s, 1' % (sT2, sT1))
    a('s_lshl_b32 %s, %s, 7' % (sT2, sT2))
    a('s_lshr_b32 %s, %s, 1' % (sT1, sT1))
    a('s_lshl_b32 %s, %s, 13' % (sT3, sT1))
    a('s_add_u32 %s, %s, %s' % (sT3, sT3, sT2))
    a('v_bfe_u32 %s, v0, 3, 1' % t1)
    a('v_lshl_add_u32 %s, %s, 2, %s' % (t1, t1, g))
    a('v_lshlrev_b32 %s, 8, %s' % (t1, t1))
    a('v_and_b32 %s, 7, v0' % t2)
    a('v_lshl_add_u32 v12, %s, 4, %s' % (t2, t1))
    a('v_add_u32 v12, %s, v12' % sT3)
    a('s_lshl_b32 %s, %s, 8' % (sT3, sT1))
    a('s_add_u32 %s, %s, %s' % (sT3, sT3, sT2))
    a('v_lshlrev_b32 %s, 3, %s' % (t2, t2))
    a('v_lshl_add_u32 v13, %s, 6, %s' % (gl, t2))
    a('v_add_u32 v13, %s, v13' % sT3)
    again = a.label('start')
    a('s_mov_b32 %s, 0' % sSpin)
    if stamps:
        a('s_memrealtime s[98:99]')
    a(again + ':')
    a('v_lshlrev_b32 %s, 2, v0' % t0)
    a('buffer_load_dword %s, %s, %s, 0 offen sc1' % (t0, t0, DBG))
    spin_check(a)
    a('s_waitcnt vmcnt(0)')
    a('s_mov_b32 %s, %s' % (sT3, sSpin))
    verdict(a, t0)
    a('s_mov_b32 %s, %s' % (sSpin, sT3))
    a('v_readlane_b32 %s, %s, %d' % (sT1, t0, D_CAL))
    a('s_cmp_eq_u32 %s, 0' % sT1)
    a('s_cbranch_scc1 %s' % again)
    if not opt.get('chain_only'):
        a('v_readlane_b32 %s, %s, %d' % (sT2, t0, D_KV))
        a('s_cmp_lg_u32 %s, 0x20202020' % sT2)
        a('s_cbranch_scc1 %s' % again)
    a('s_and_b32 %s, %s, 1' % (sT1, sT1))
    if 'forcecal' in opt:
        a('s_mov_b32 %s, %d' % (sT1, opt['forcecal'] & 1))
    if opt.get('flipcal'):
        a('s_xor_b32 %s, %s, 1' % (sT1, sT1))
    a('s_lshl_b32 %s, %s, 13' % (sT1, sT1))
    a('s_add_u32 %s, %s, %s' % (sPubR, sPubR, sT1))
    a('s_add_u32 %s, %s, %s' % (sMemRin, sMemRin, sT1))
    if stamps:
        a('s_memtime s[92:93]')
        a('s_memrealtime s[100:101]')
    if opt.get('fine'):
        edge(a, 0)
        a('s_lshl_b32 %s, %s, 5' % (sT0, sGRP))
        a('s_add_u32 %s, %s, %s' % (sT0, sT0, sIDX))
        a('s_lshl_b32 %s, %s, 2' % (sT0, sT0))
        a('s_add_u32 %s, %s, %s' % (sT0, sT0, sW))
        a('s_lshl_b32 %s, %s, 12' % (sT0, sT0))
        a('s_add_u32 s26, %s, 0x%x' % (sT0, STAMP + 4096 + 64))
    fast, slow_ = a.label('loopfast'), a.label('loopsafe')
    a('s_sub_u32 %s, %s, 8192' % (sKxN, sVx))
    k_dma(a)
    a('s_waitcnt vmcnt(0)')
    a('s_cmp_lg_u32 %s, 0' % sSAFE)
    a('s_cbranch_scc1 %s' % slow_)
    fin = a.label('chainfin')
    step_loop(a, False, fast, fin, opt)
    step_loop(a, True, slow_, fin, opt)
    a(fin + ':')
    if opt.get('fine'):
        edge(a, 1)
    a('s_waitcnt lgkmcnt(0)')
    a('s_barrier')
    stage(a)
    a('s_add_u32 %s, %s, 0x20000' % (sKM, sKM))
    a('v_lshrrev_b32 %s, 1, v1' % T(62))
    a('s_waitcnt lgkmcnt(0)')
    a('buffer_store_dwordx2 v[14:15], %s, %s, %s offen sc1' % (T(62), WS, sKM))
    if opt.get('cnt'):
        a('s_lshl_b32 %s, %s, 5' % (sT0, sGRP))
        a('s_add_u32 %s, %s, %s' % (sT0, sT0, sIDX))
        a('s_lshl_b32 %s, %s, 2' % (sT0, sT0))
        a('s_add_u32 %s, %s, %s' % (sT0, sT0, sW))
        a('s_lshl_b32 %s, %s, 2' % (sT0, sT0))
        a('s_add_u32 %s, %s, 0x%x' % (sT0, sT0, STAMP + 2048))
        a('v_mov_b32 v16, %s' % sRetry)
        a('buffer_store_dword v16, off, %s, %s' % (WS, sT0))
        if opt.get('acc'):
            for k in range(4):
                a('v_mov_b32 v%d, s%d' % (20 + k, (20 + k * 1) if (opt.get('ackd') and k < 2) else 82 + k))
            a('s_lshl_b32 %s, %s, 2' % (sT0, sT0))
            a('s_sub_u32 %s, %s, 0x%x' % (sT0, sT0, 4 * (STAMP + 2048) - STAMP - 0x180000))
            a('buffer_store_dwordx4 v[20:23], off, %s, %s' % (WS, sT0))
    a('s_waitcnt vmcnt(0)')
    a('s_barrier')
    a('s_cmp_lg_u32 %s, 0' % sW)
    a('s_cbranch_scc1 L_end')
    a('v_mov_b32 v14, 64')
    a('buffer_store_dword v14, off, %s, %s sc1' % (WS, sFlag))
    if stamps:
        a('s_memtime s[94:95]')
        a('s_memrealtime s[86:87]')
        a('s_waitcnt lgkmcnt(0)')
        a('s_sub_u32 s94, s94, s92')
        a('s_sub_u32 s86, s86, s100')
        a('v_mov_b32 v16, s94')
        a('v_mov_b32 v17, s86')
        a('v_mov_b32 v18, s100')
        a('v_mov_b32 v19, s98')
        a('s_lshl_b32 %s, %s, 5' % (sT0, sGRP))
        a('s_add_u32 %s, %s, %s' % (sT0, sT0, sIDX))
        a('s_lshl_b32 %s, %s, 4' % (sT0, sT0))
        a('s_add_u32 %s, %s, 0x%x' % (sT0, sT0, STAMP))
        a('v_mov_b32 v20, s24')
        a('buffer_store_dwordx4 v[16:19], off, %s, %s' % (WS, sT0))
        a('buffer_store_dword v20, off, %s, %s offset:1024' % (WS, sT0))
    a('s_branch L_end')


AREG = [40, 44, 48, 40, 44, 48, 52, 56, 40, 44]


def edge(a, k):
    lp = a.label('edge')
    a('s_memrealtime s[64:65]')
    a('s_waitcnt lgkmcnt(0)')
    a(lp + ':')
    a('s_memrealtime s[66:67]')
    a('s_memtime s[68:69]')
    a('s_waitcnt lgkmcnt(0)')
    a('s_cmp_eq_u32 s64, s66')
    a('s_cbranch_scc1 %s' % lp)
    a('s_lshl_b32 %s, %s, 5' % (sT0, sGRP))
    a('s_add_u32 %s, %s, %s' % (sT0, sT0, sIDX))
    a('s_lshl_b32 %s, %s, 2' % (sT0, sT0))
    a('s_add_u32 %s, %s, %s' % (sT0, sT0, sW))
    a('s_lshl_b32 %s, %s, 4' % (sT0, sT0))
    a('s_add_u32 %s, %s, 0x%x' % (sT0, sT0, STAMP + 0x1c0000 + 8 * k))
    a('v_mov_b32 %s, s66' % T(62))
    a('v_mov_b32 %s, s68' % T(63))
    a('buffer_store_dwordx2 %s, off, %s, %s' % (T(62, 2), WS, sT0))


def k_dma(a):
    a('s_sub_u32 m0, %s, 8192' % sVm0)
    a('s_nop 0')
    for j in range(2):
        a('buffer_load_dwordx4 v1, %s, %s offen offset:%d sc1 lds' % (WS, sKxN, 1024 * j))
    a('s_add_u32 %s, %s, 0x80000' % (sKxN, sKxN))


def stage(a):
    skip = a.label('stage')
    a('s_cmp_lg_u32 %s, 0' % sGRP)
    a('s_cbranch_scc1 %s' % skip)
    a('s_lshl_b32 %s, %s, 6' % (sT0, sW))
    a('v_bfe_u32 v14, v0, 1, 3')
    a('v_mul_u32_u24 v14, %d, v14' % RP)
    a('v_lshrrev_b32 v15, 4, v0')
    a('v_lshl_add_u32 v14, v15, 4, v14')
    a('v_and_b32 v15, 1, v0')
    a('v_lshl_add_u32 v14, v15, 3, v14')
    a('v_add_u32 v14, %s, v14' % sT0)
    a('ds_read_b64 v[14:15], v14 offset:%d' % L_KT)
    a(skip + ':')


def backoff(a, cycles):
    n = cycles // 4
    while n >= 16:
        a('s_sleep 1')
        n -= 16
    if n > 0:
        a('s_nop %d' % (n - 1))


def g_loads(a, r, soff):
    a('buffer_load_dwordx4 %s, v11, %s, %s offen sc1' % (T(r[0], 4), WS, soff))
    a('buffer_load_dword %s, v9, %s, %s offen sc1' % (T(r[1]), WS, soff))


def g_writes(r, o=0):
    return ['ds_write_b128 v11, %s offset:%d' % (T(r[0], 4), o), 'ds_write_b32 v9, %s offset:%d' % (T(r[1]), o)]


def g_check(r):
    return ['v_max3_u32 %s, %s, %s, %s' % (T(63), T(r[0]), T(r[0] + 1), T(r[0] + 2)),
            'v_max3_u32 %s, %s, %s, %s' % (T(63), T(63), T(r[0] + 3), T(r[1])),
            'v_cmp_eq_u32 vcc, -1, %s' % T(63)]


def pack_ops(r, twice=False):
    ops = ['v_add_f32 %s, %s, %s' % (T(r + 2), T(r), T(r + 2)),
           'v_add_f32 %s, %s, %s' % (T(r + 3), T(r + 1), T(r + 3)),
           'v_cvt_pk_bf16_f32 %s, %s, %s' % (T(r), T(r + 2), T(r + 3))]
    if twice:
        ops.append('v_cvt_pk_bf16_f32 %s, %s, %s' % (T(r + 1), T(r + 2), T(r + 3)))
    return ops


def step_loop(a, safe, head, fin, opt):
    loc = ' sc1' if safe else ''
    st = opt.get('phase_stamps')
    sm = lambda acc, A, B: 'v_smfmac_f32_16x16x64_bf16 %s, %s, %s, v4' % (T(acc, 4), T(A, 4), B)
    mf = lambda D, A, B, C: 'v_mfma_f32_16x16x32_bf16 %s, %s, %s, %s' % (T(D, 4), T(A, 4), T(B, 4), C)
    B0, B1 = T(24, 8), T(32, 8)
    lq = []
    vA = 'v10'

    def stamp(i):
        if opt.get('fine') and i not in (2, 4, 5):
            a('s_memtime s[%d:%d]' % ((86, 87) if i == 1 else (64 + 2 * i, 65 + 2 * i)))
            if i == 3:
                a('s_mov_b32 s66, s86')
        if opt.get('acc') and i in (1, 3, 6, 7, 8):
            if i == 1:
                for k, (x, y) in enumerate(((3, 1), (6, 3), (7, 6), (8, 7))):
                    a('s_sub_u32 %s, s%d, s%d' % (sT0, 64 + 2 * x, 64 + 2 * y))
                    a('s_add_u32 s%d, s%d, %s' % (82 + k, 82 + k, sT0))
            a('s_memtime s[%d:%d]' % (64 + 2 * i, 65 + 2 * i))
        if st:
            a('%s s[%d:%d]' % ('s_memrealtime' if opt.get('rt') else 's_memtime', 64 + 2 * i, 65 + 2 * i))

    def count(inc):
        if st or opt.get('cnt') or opt.get('fine'):
            a('s_add_u32 %s, %s, 0x%x' % (sRetry, sRetry, inc))

    def ds(text, tag):
        a(text)
        lq.append(tag)

    def lwait(tag):
        if tag not in lq:
            return
        last = max(i for i, t in enumerate(lq) if t == tag)
        a('s_waitcnt lgkmcnt(%d)' % min(len(lq) - 1 - last, 15))
        del lq[:last + 1]

    def ldslot(dst, tile, half, tag='x'):
        o = lds_off(tile, half)
        ds('ds_read_b128 %s, %s offset:%d' % (T(dst, 4), 'v3' if o >> 16 else 'v2', o & 65535), tag)
        ds('ds_read_b128 %s, %s offset:%d' % (T(dst + 4, 4), 'v3' if o >> 16 else 'v2', (o & 65535) + 1024), tag)

    def img(dst, c):
        ds('ds_read_b128 %s, %s offset:%d' % (T(dst, 4), vA, L_IMG - UB + c * 1024), 'A%d' % c)

    def opread(dst, base, ks, tag):
        ds('ds_read_b128 %s, v6 offset:%d' % (T(dst, 4), base + ks * 64), tag)

    def zero(lo, hi):
        for r in range(lo, hi, 2):
            a('v_mov_b64 %s, 0' % T(r, 2))

    def barrier():
        a('s_waitcnt lgkmcnt(0)')
        a('s_barrier')
        del lq[:]

    SA, SB, SR = (56, 61), (52, 62), (52, 60)

    def prep():
        zero(0, 24)
        a('s_and_b32 %s, %s, 15' % (sT0, sS))
        a('s_or_b32 %s, %s, %s' % (sT0, sT0, sW16))
        a('s_add_u32 %s, %s, %d' % (sChk, sS, 4 + 16 * D_KV))
        a('s_lshr_b32 %s, %s, 2' % (sChk, sChk))
        a('s_cmp_eq_u32 %s, 12' % sT0)
        a('s_cselect_b32 %s, %s, 0' % (sChk, sChk))
        a('s_cmp_lt_u32 %s, 48' % sS)
        a('s_cselect_b32 %s, %s, 0' % (sChk, sChk))
    b1 = a.label('b1')
    a(head + ':')
    prep()
    ldslot(24, ('V', 0), 0)
    ldslot(32, ('V', 0), 1)
    a('s_branch %s' % b1)
    a('.p2align 6')
    for _ in range(opt.get('pad', 0)):
        a('s_nop 0')
    top = head + '_top'
    a(top + ':')
    stamp(0)
    backoff(a, opt.get('gdelay', 170))
    if opt.get('fine'):
        stamp(9)
    again, got = a.label('gag'), a.label('got')
    g_loads(a, SA, sMemL)
    backoff(a, opt.get('gspace', 60))
    g_loads(a, SB, sMemL)
    a('s_waitcnt vmcnt(11)')
    ldslot(24, ('V', 0), 0)
    ldslot(32, ('V', 0), 1)
    a('s_mov_b32 %s, 0' % sSpin)
    if opt.get('fine'):
        a('s_memtime s[68:69]')
        a('s_waitcnt vmcnt(2)')
        a('s_memtime s[72:73]')
    a(again + ':')
    for k, S_ in enumerate((SA, SB)):
        a('s_waitcnt vmcnt(2)')
        for x in g_writes(S_) + g_check(S_):
            a(x)
        a('s_cbranch_vccz %s' % got)
        g_loads(a, S_, sMemL)
        count(1)
    spin_check(a)
    a('s_branch %s' % again)
    a(got + ':')
    backoff(a, opt.get('rdelay', 0))
    g_loads(a, SR, sMemRin)
    a(b1 + ':')
    barrier()
    stamp(1)
    img(40, 0)
    img(44, 1)
    img(48, 2)
    RI = opt.get('rissue', -1)
    a('s_mov_b32 m0, %s' % sVm0)
    a('s_nop 0')
    for j in range(2):
        a('buffer_load_dwordx4 v1, %s, %s offen offset:%d sc1 lds' % (WS, sVx, 1024 * j))
    if opt.get('fine'):
        for i in range(11):
            a('v_writelane_b32 %s, s%d, %d' % (T(62), 64 + 2 * i, i))
        a('v_writelane_b32 %s, %s, 12' % (T(62), sRetry))
        a('v_lshrrev_b32 %s, 2, v1' % T(63))
        a('s_mov_b64 exec, 0x1fff')
        a('buffer_store_dword %s, %s, %s, s26 offen' % (T(62), T(63), WS))
        a('s_mov_b64 exec, -1')
        a('s_add_u32 s26, s26, 64')
    slow_ops = ['buffer_store_dwordx2 v[14:15], %s, %s, %s offen sc1' % (T(61), WS, sKM),
                'v_lshlrev_b32 %s, 3, v1' % T(63), 's_mov_b32 m0, 0x%x' % (L_KT + 3072), 's_mov_b32 exec_hi, 0',
                'buffer_load_dword %s, %s, %s offen sc1 lds' % (T(63), WS, sWarm), 's_mov_b32 exec_hi, -1']
    Areg = AREG
    RP_ = opt.get('rpos', 21)
    lops = []
    for c in range(5):
        nxt = ('V', c + 1) if c < 4 else ('Q', 9)
        lops += [(c, 16, B0, nxt, 0), (c, 0, slot(('Q', c), 0), None, 0), (c, 4, slot(('Q', c), 1), None, 0),
                (c, 20, B1, nxt, 1), (c, 8, slot(('K', c), 0), None, 0), (c, 12, slot(('K', c), 1), None, 0)]
    wr, ck = g_writes(SR, 5120), g_check(SR)
    norem, rok, ragain, late, watch = (a.label(x) for x in ('norem', 'rok', 'rag', 'late', 'watch'))

    def local_op(i, plain=False):
        c, acc, B, nxt, half = lops[i]
        if plain:
            a('s_waitcnt lgkmcnt(0)')
        else:
            lwait('A%d' % c)
            if nxt:
                lwait('B%d' % half)
        a(sm(acc, Areg[c], B))
        if nxt:
            ldslot(24 + 8 * half, nxt, half, 'B%d' % half)
        if i % 6 == 5 and c < 2:
            img(Areg[c + 3], c + 3)
    BP = opt.get('bpos', 23)
    assert RP_ <= BP - 2
    for i in range(30):
        local_op(i)
        if i == RP_:
            a('s_cmp_eq_u32 %s, 0' % sS)
            a('s_cbranch_scc1 %s' % norem)
            a('s_waitcnt vmcnt(%d)' % (3 if opt.get('fine') else 2))
            a(ck[0])
            a(ck[1])
        if i == RP_ + 1:
            a(ck[2])
        if i == RP_ + 2:
            a('s_cbranch_vccnz %s' % late)
            for x in wr:
                ds(x, 'w')
        if i == BP:
            a(rok + ':')
            a('v_lshrrev_b32 %s, 1, v1' % T(61))
            stamp(2)
            barrier()
            stamp(3)
            for cc in range(5, 10 if BP == 29 else 9):
                img(Areg[cc], cc)
        elif i == 29:
            img(Areg[9], 9)

    def tail_paths():
        keep = list(lq)
        a(late + ':')
        for i in range(RP_ + 3, BP + 1):
            local_op(i, True)
        count(0x10000)
        a('s_mov_b32 %s, 0' % sSpin)
        a('s_add_u32 %s, %s, %s' % (sT0, sMemRin, sLine))
        a('s_branch %s' % ragain)
        a(watch + ':')
        a('buffer_load_dword %s, off, %s, %s sc1' % (T(63), WS, sT0))
        spin_check(a)
        a('s_waitcnt vmcnt(0)')
        a('v_cmp_eq_u32 vcc, -1, %s' % T(63))
        a('s_cbranch_vccnz %s' % watch)
        count(0x1000000)
        backoff(a, opt.get('rspace', 60))
        a(ragain + ':')
        g_loads(a, SR, sMemRin)
        spin_check(a)
        a('s_waitcnt vmcnt(0)')
        for x in ck:
            a(x)
        a('s_cbranch_vccnz %s' % watch)
        for x in wr:
            a(x)
        a('s_branch %s' % rok)
        a(norem + ':')
        for i in range(RP_ + 1, BP + 1):
            local_op(i, True)
        a('s_branch %s' % rok)
        lq[:] = keep
    kxo = lambda kt, ks: L_KX - UB + kt * 4096 + ks * 1024
    order = [(0, 0), (1, 0), (0, 1), (1, 1), (0, 2), (1, 2), (0, 3), (1, 3)]
    xreg = [60, 0, 4, Areg[5], Areg[6], Areg[7], Areg[8], Areg[9]]

    def xread(i):
        ds('ds_read_b128 %s, v1 offset:%d' % (T(xreg[i], 4), kxo(*order[i])), 'X%d' % i)
    seq = [('Q', 0, c) for c in range(5, 9)] + [('Q', 1, 5), ('Q', 1, 6), ('Q', 0, 9), ('Q', 1, 7), ('Q', 1, 8), ('Q', 1, 9)] + \
          [('K', t, c) for t in range(2) for c in range(5, 10)] + \
          [('V', t, c) for c in range(5, 10) for t in range(2)]
    acc = {'Q': 0, 'K': 8, 'V': 16}
    gap = {i: [] for i in range(30)}
    w16 = lambda r, off: [('w', 'ds_write_b16 v5, %s offset:%d' % (T(r), off)),
                          ('w', 'ds_write_b16_d16_hi v5, %s offset:%d' % (T(r), off + RP))]
    for j, (r, off) in enumerate(((0, L_QT), (4, L_QT + 32), (8, L_KT))):
        ops = pack_ops(r)
        g0 = (8, 12, 16)[j]
        for k in range(3):
            gap[g0 + k].append(ops[k])
        gap[g0 + 3] = w16(r, off) + gap[g0 + 3]
    gap[21] += pack_ops(12)
    gap[22] = w16(12, L_KT + 32) + gap[22]
    for x in [slow_ops[0], slow_ops[2], 's_sub_u32 %s, %s, 1' % (sT0, sS), 's_max_i32 %s, %s, 0' % (sT0, sT0), slow_ops[1]]:
        a(x)
    gap[0] += slow_ops[3:]
    for i, (m, t, c) in enumerate(seq):
        lwait('A%d' % c)
        if m == 'Q' and c == 9:
            lwait('B%d' % t)
        a(sm(acc[m] + 4 * t, Areg[c], (B0, B1)[t] if (m, c) == ('Q', 9) else slot((m, c), t)))
        if i in (5, 13, 17):
            xread((5, 13, 17).index(i))
        for x in gap[i]:
            if isinstance(x, tuple):
                ds(x[1], x[0])
            else:
                a(x)
        if i == 19:
            stamp(4)
        if i == 23:
            xread(3)
            xread(4)
        if i == 24:
            a('s_waitcnt vmcnt(2) lgkmcnt(2)')
            a('s_barrier')
            lq[:] = ['X3', 'X4']
            opread(24, L_QT, 0, 'q0')
        if i == 25:
            opread(28, L_QT, 1, 'q1')
            xread(5)
        if i == 26:
            opread(32, L_QT, 2, 'q2')
        if i == 27:
            xread(6)
            opread(36, L_QT, 3, 'q3')
        if i == 29:
            xread(7)
    kmreg = [0, 4, Areg[5], Areg[6]]
    vp = ['v_add_f32 %s, %s, %s' % (T(18), T(16), T(18)), 'v_add_f32 %s, %s, %s' % (T(19), T(17), T(19)),
          'v_add_f32 %s, %s, %s' % (T(22), T(20), T(22)), 'v_add_f32 %s, %s, %s' % (T(23), T(21), T(23))]
    for i, (kt, ks) in enumerate(order):
        lwait('q%d' % ks)
        lwait('X%d' % i)
        D = 8 + 4 * kt
        a(mf(D, xreg[i], 24 + 4 * ks, '0' if ks == 0 else T(D, 4)))
        if 1 <= i <= 4:
            opread(kmreg[i - 1], L_KT, i - 1, 'M%d' % (i - 1))
            a(vp[i - 1])
        if i == 0:
            a('v_mov_b32 v14, %s' % sT0)
        if i == 5:
            ds('ds_read_b128 %s, v11 offset:%d' % (T(Areg[7], 4), L_KX + 8192), 'vx')
            nf = a.label('nf')
            a('s_cmp_lg_u32 %s, 3' % sW)
            a('s_cbranch_scc1 %s' % nf)
            a('buffer_store_dword v14, off, %s, %s sc1' % (WS, sFlag))
            a(nf + ':')
        if i == 6 and not opt.get('chain_only'):
            ns = a.label('ns')
            a('s_cmp_eq_u32 %s, 0' % sChk)
            a('s_cbranch_scc1 %s' % ns)
            a('s_mov_b32 m0, 0x%x' % (L_KT + 3584))
            a('s_nop 0')
            a('buffer_load_dword off, %s, %s sc1 lds' % (DBG, sChk))
            a(ns + ':')
        if i == 6:
            ds('ds_read_b128 %s, v11 offset:%d' % (T(Areg[8], 4), L_KX + 8192 + 4096), 'vx')
            a('v_cvt_pk_bf16_f32 v15, %s, %s' % (T(22), T(23)))
        if i == 7:
            a('v_cvt_pk_bf16_f32 v14, %s, %s' % (T(18), T(19)))
            a('v_mov_b32 %s, 0x3f803f80' % T(20))
    VX0, VX1 = Areg[7], Areg[8]
    fill = ['v_mov_b32 %s, 0x3f803f80' % T(21),
            'v_max3_f32 %s, %s, %s, %s' % (T(16), T(8), T(9), T(10)),
            'v_max3_f32 %s, %s, %s, %s' % (T(16), T(16), T(11), T(12)),
            'v_max3_f32 %s, %s, %s, %s' % (T(16), T(16), T(13), T(14)),
            'v_max_f32 %s, %s, %s' % (T(16), T(16), T(15)),
            'v_mov_b32 %s, 0x3f803f80' % T(22), 'v_mov_b32 %s, 0x3f803f80' % T(23)]
    for ks in range(4):
        lwait('M%d' % ks)
        a(mf(60, kmreg[ks], 24 + 4 * ks, '0' if ks == 0 else T(60, 4)))
        if ks < 3:
            a(fill[2 * ks])
            a(fill[2 * ks + 1])
    ldslot(24, ('O', 3), 0, 'bo')
    ldslot(32, ('O', 3), 1, 'bo')
    a('s_cmp_eq_u32 %s, 63' % sS)
    a('s_cbranch_scc1 %s' % fin)
    a(fill[6])
    stamp(5)
    a('v_max3_f32 %s, %s, %s, %s' % (T(16), T(16), T(60), T(61)))
    a('v_mov_b32 %s, %s' % (T(17), T(16)))
    a('v_mov_b32 %s, 0' % T(5))
    a('v_mov_b32 %s, 0' % T(6))
    a('v_permlane32_swap_b32 %s, %s' % (T(16), T(17)))
    a('v_max_f32 %s, %s, %s' % (T(16), T(16), T(17)))
    a('v_mov_b32 %s, %s' % (T(17), T(16)))
    zero(44, 48)
    a('v_permlane16_swap_b32 %s, %s' % (T(16), T(17)))
    a('v_max_f32 %s, %s, %s' % (T(16), T(16), T(17)))
    a('v_mul_f32 %s, %s, %s' % (T(62), sC, T(16)))
    for r in range(8):
        a('v_fma_f32 %s, %s, %s, -%s' % (T(8 + r), T(8 + r), sC, T(62)))
    for r in range(8):
        a('v_exp_f32 %s, %s' % (T(8 + r), T(8 + r)))
    a('v_fma_f32 %s, %s, %s, -%s' % (T(60), T(60), sC, T(62)))
    for r in range(4):
        a('v_cvt_pk_bf16_f32 %s, %s, %s' % (T(r), T(8 + 2 * r), T(9 + 2 * r)))
    a('v_fma_f32 %s, %s, %s, -%s' % (T(61), T(61), sC, T(62)))
    a('v_exp_f32 %s, %s' % (T(60), T(60)))
    a(mf(8, 20, 0, '0'))
    a('v_exp_f32 %s, %s' % (T(61), T(61)))
    lwait('vx')
    a(mf(12, VX0, 0, '0'))
    a('v_cvt_pk_bf16_f32 %s, %s, %s' % (T(4), T(60), T(61)))
    a('v_cvt_pk_bf16_f32 %s, %s, %s' % (T(7), T(60), T(61)))
    a(mf(16, VX1, 0, '0'))
    zero(48, 52)
    m16 = lambda D, A, B: 'v_mfma_f32_16x16x16_bf16 %s, %s, %s, %s' % (T(D, 4), A, T(B, 2), T(D, 4))
    a(m16(8, T(20, 2), 4))
    zero(52, 56)
    a(m16(12, 'v[14:15]', 4))
    zero(56, 60)
    a(m16(16, 'v[14:15]', 6))
    zero(40, 44)
    a('v_rcp_f32 %s, %s' % (T(8), T(8)))
    a('s_mov_b64 exec, %s' % sN8)
    a('v_mov_b64 %s, %s' % (T(12, 2), T(16, 2)))
    a('v_mov_b64 %s, %s' % (T(14, 2), T(18, 2)))
    a('s_mov_b64 exec, -1')
    for r in (12, 14):
        a('v_pk_mul_f32 %s, %s, %s op_sel_hi:[1,0]' % (T(r, 2), T(r, 2), T(8, 2)))
    a('v_cvt_pk_bf16_f32 %s, %s, %s' % (T(12), T(12), T(13)))
    a('v_cvt_pk_bf16_f32 %s, %s, %s' % (T(13), T(14), T(15)))
    a('ds_write_b64 v7, %s' % T(12, 2))
    a('s_add_u32 %s, %s, 1' % (sS, sS))
    for s_, d in ((sMemRin, 16384), (sKM, 0x20000), (sVx, 0x80000), (sWarm, 0x80000)):
        a('s_add_u32 %s, %s, 0x%x' % (s_, s_, d))
    a('s_xor_b32 %s, %s, 8192' % (sMemL, sMemL))
    barrier()
    stamp(6)
    ds('ds_read_b128 %s, v1 offset:%d' % (T(16, 4), L_OI), 'o0')
    ds('ds_read_b128 %s, v1 offset:%d' % (T(20, 4), L_OI + 1024), 'o1')
    wo = [(slot(('O', t), 0), slot(('O', t), 1)) for t in range(3)] + [(B0, B1), (T(0, 8), T(8, 8))]
    store = lambda t: 'buffer_store_dword %s, v8, %s, %s offen%s' % (T(40 + 4 * t), WS, sP[t], loc)
    gaps = {i: [] for i in range(10)}
    for t in range(3):
        ops = pack_ops(40 + 4 * t)
        gaps[2 * t + 3] += ops[:2]
        gaps[2 * t + 4] += ops[2:]
        gaps[2 * t + 5].insert(0, store(t))
    a('s_sub_u32 m0, %s, 8192' % sVm0)
    for i in range(10):
        t, kc = i // 2, i & 1
        if i < 2:
            lwait('o%d' % i)
        if i >= 8:
            lwait('w%d' % kc)
        a(sm(40 + 4 * t, 16 + 4 * kc, wo[t][kc]))
        if i < 2:
            ldslot(8 * i, ('O', 4), i, 'w%d' % i)
        if i in (2, 3):
            a('buffer_load_dwordx4 v1, %s, %s offen offset:%d sc1 lds' % (WS, sKxN, 1024 * (i - 2)))
        for x in gaps[i]:
            a(x)
    a('s_add_u32 %s, %s, 0x80000' % (sKxN, sKxN))
    for x in pack_ops(52):
        a(x)
    p4 = pack_ops(56)
    a(p4[0])
    a(p4[1])
    a(p4[2])
    a(store(3))
    a(store(4))
    stamp(7)
    for t in range(5):
        a('s_xor_b32 %s, %s, 0x40000' % (sP[t], sP[t]))
    noown, again, okA, join = a.label('noown'), a.label('oag'), a.label('ook'), a.label('ojoin')
    a('s_cmp_eq_u32 %s, 0' % sOwner)
    a('s_cbranch_scc1 %s' % noown)
    SETS = (44, 24)
    SEL, ACC, CK = 40, 60, 23

    def loads(r):
        for t in range(4):
            a('buffer_load_dwordx4 %s, v12, %s, %s offen offset:%d sc1' % (
                T(r + 4 * t, 4), WS, sOwn0 if t < 2 else sOwn1, 2048 * (t & 1)))

    def reduce_(r, young):
        for t in range(4):
            a('s_waitcnt vmcnt(%d)' % (young + 3 - t))
            a(mf(ACC, SEL, r + 4 * t, '0' if t == 0 else T(ACC, 4)))
            x = r + 4 * t
            if t == 0:
                a('v_max3_u32 %s, %s, %s, %s' % (T(CK), T(x), T(x + 1), T(x + 2)))
                a('v_max_u32 %s, %s, %s' % (T(CK), T(CK), T(x + 3)))
            else:
                a('v_max3_u32 %s, %s, %s, %s' % (T(CK), T(CK), T(x), T(x + 1)))
                a('v_max3_u32 %s, %s, %s, %s' % (T(CK), T(CK), T(x + 2), T(x + 3)))
        a('v_cmp_eq_u32 vcc, -1, %s' % T(CK))
    a('v_and_b32 %s, 3, v0' % T(60))
    a('v_bfe_u32 %s, v0, 2, 1' % T(61))
    a('v_lshlrev_b32 %s, 4, %s' % (T(61), T(61)))
    a('v_mov_b32 %s, 0x3f80' % T(62))
    a('v_lshlrev_b32 %s, %s, %s' % (T(61), T(61), T(62)))
    for p in range(4):
        a('v_cmp_eq_u32 vcc, %d, %s' % (p, T(60)))
        a('v_cndmask_b32 %s, 0, %s, vcc' % (T(SEL + p), T(61)))
    a('s_mov_b32 %s, 0' % sSpin)
    backoff(a, opt.get('odelay', 40))
    loads(SETS[0])
    prep()
    backoff(a, max(0, opt.get('ospace', 80) - 80))
    loads(SETS[1])
    stage(a)
    a(again + ':')
    for r in SETS:
        reduce_(r, 4)
        a('s_cbranch_vccz %s' % okA)
        loads(r)
        count(0x100)
    spin_check(a)
    a('s_branch %s' % again)
    a(okA + ':')
    stamp(10)
    a('v_mov_b32 %s, 0' % T(CK))
    a('v_mov_b64 %s, -1' % T(40, 2))
    a('v_mov_b64 %s, -1' % T(42, 2))
    for r in range(4):
        a('v_add_f32_dpp %s, %s, %s row_ror:8 row_mask:0xf bank_mask:0xf' % (T(ACC + r), T(ACC + r), T(ACC + r)))
    a('v_cvt_pk_bf16_f32 %s, %s, %s' % (T(ACC), T(ACC), T(ACC + 1)))
    a('v_cvt_pk_bf16_f32 %s, %s, %s' % (T(ACC + 1), T(ACC + 2), T(ACC + 3)))
    a('s_mov_b64 exec, 0x00ff00ff')
    a('buffer_store_dwordx2 %s, v13, %s, %s offen%s' % (T(ACC, 2), WS, sPubL, loc))
    a('s_barrier')
    a('buffer_store_dwordx2 %s, v13, %s, %s offen sc1' % (T(ACC, 2), WS, sPubR))
    a('s_xor_b32 %s, %s, 8192' % (sPubL, sPubL))
    a('buffer_store_dwordx2 %s, v13, %s, %s offen%s' % (T(40, 2), WS, sPubL, loc))
    a('s_mov_b64 exec, -1')
    stamp(8)
    for t in range(4):
        a('buffer_store_dwordx4 %s, v12, %s, %s offen offset:%d%s' % (
            T(40, 4), WS, sOwn0 if t < 2 else sOwn1, 2048 * (t & 1), loc))
    a('s_xor_b32 %s, %s, 0x40000' % (sOwn0, sOwn0))
    a('s_xor_b32 %s, %s, 0x40000' % (sOwn1, sOwn1))
    if opt.get('ackd'):
        a('s_waitcnt vmcnt(1)')
        a('s_memtime s[16:17]')
        a('s_waitcnt vmcnt(0)')
        a('s_memtime s[18:19]')
        a('s_waitcnt lgkmcnt(0)')
        a('s_sub_u32 %s, s16, s80' % sT0)
        a('s_add_u32 s20, s20, %s' % sT0)
        a('s_sub_u32 %s, s18, s80' % sT0)
        a('s_add_u32 s21, s21, %s' % sT0)
    a('s_add_u32 %s, %s, 16384' % (sPubR, sPubR))
    a('s_branch %s' % top)
    a(noown + ':')
    stage(a)
    if not opt.get('chain_only'):
        nochk, ag = a.label('nochk'), a.label('kvag')
        a('s_cmp_eq_u32 %s, 0' % sChk)
        a('s_cbranch_scc1 %s' % nochk)
        a('v_mov_b32 %s, 0x%x' % (T(0), L_KT + 3584))
        a('s_waitcnt vmcnt(7)')
        a('ds_read_b32 %s, %s' % (T(0), T(0)))
        a('s_mov_b32 %s, 0' % sSpin)
        a('s_waitcnt lgkmcnt(0)')
        a(ag + ':')
        a('v_cmp_ne_u32 vcc, 0x20202020, %s' % T(0))
        a('s_cbranch_vccz %s' % nochk)
        a('buffer_load_dword %s, off, %s, %s sc1' % (T(0), DBG, sChk))
        spin_check(a)
        a('s_waitcnt vmcnt(0)')
        a('s_branch %s' % ag)
        a(nochk + ':')
    prep()
    a('s_barrier')
    stamp(8)
    backoff(a, 100)
    a('s_branch %s' % top)
    tail_paths()


def dump_stamps(a):
    a('s_lshl_b32 %s, %s, 5' % (sT0, sGRP))
    a('s_add_u32 %s, %s, %s' % (sT0, sT0, sIDX))
    a('s_lshl_b32 %s, %s, 2' % (sT0, sT0))
    a('s_add_u32 %s, %s, %s' % (sT0, sT0, sW))
    a('s_lshl_b32 %s, %s, 6' % (sT0, sT0))
    a('s_add_u32 %s, %s, %s' % (sT0, sT0, sS))
    a('s_lshl_b32 %s, %s, 6' % (sT0, sT0))
    a('s_add_u32 %s, %s, 0x%x' % (sT0, sT0, STAMP + 4096))
    a('s_waitcnt lgkmcnt(0)')
    for i in range(9):
        a('v_writelane_b32 %s, s%d, %d' % (T(62), 64 + 2 * i, i))
    a('v_writelane_b32 %s, %s, 12' % (T(62), sRetry))
    a('v_lshrrev_b32 %s, 2, v1' % T(63))
    a('s_mov_b64 exec, 0x1fff')
    a('buffer_store_dword %s, %s, %s, %s offen' % (T(62), T(63), WS, sT0))
    a('s_mov_b64 exec, -1')
```

```python
import math
import struct
from layout import *
from chain import sW, sGRP, sIDX, sSAFE, sT0, sT1, sT2, sT3, sSpin, WS, DBG, srd, verdict, census, spin_check, backoff

sJ = 's32'
sRB, sCT, sKIND = 's33', 's34', 's35'
sXo, sWo, sK, sBase = 's36', 's37', 's38', 's39'
sRound = 's40'
XS, WSR = 's[12:15]', 's[16:19]'


def V(i, n=1):
    return 'v%d' % i if n == 1 else 'v[%d:%d]' % (i, i + n - 1)


def A(i, n=1):
    return 'a%d' % i if n == 1 else 'a[%d:%d]' % (i, i + n - 1)


def arrive(a, word, amount='1'):
    skip = a.label('sig')
    a('s_cmp_lg_u32 %s, 0' % sW)
    a('s_cbranch_scc1 %s' % skip)
    a('s_mov_b64 exec, 1')
    a('v_mov_b32 v2, %s' % amount)
    a('buffer_atomic_add v2, off, %s, %s sc1' % (DBG, word))
    a('s_mov_b64 exec, -1')
    a(skip + ':')


def signal(a, word, amount='1'):
    a('s_waitcnt vmcnt(0)')
    a('s_barrier')
    arrive(a, word, amount)


def wait_dbg(a, conds, tmp='v2'):
    again = a.label('wd')
    a('s_mov_b32 %s, 0' % sSpin)
    a('s_branch %s' % (again + 'a'))
    a(again + ':')
    a('s_sleep 8')
    a(again + 'a:')
    a('v_lshlrev_b32 %s, 2, v0' % tmp)
    a('buffer_load_dword %s, %s, %s, 0 offen sc1' % (tmp, tmp, DBG))
    spin_check(a)
    a('s_waitcnt vmcnt(0)')
    for c in conds:
        w, val = c[:2]
        a('v_readlane_b32 %s, %s, %s' % (sT0, tmp, w))
        if len(c) > 2:
            a('s_bfe_u32 %s, %s, %s' % (sT0, sT0, c[2]))
        a('s_cmp_lg_u32 %s, %d' % (sT0, val))
        a('s_cbranch_scc1 %s' % again)


XF, WF = 16, 32
vRA = 72
vRB = 80
vXD, vWD = 88, 90
vEP = 92
sSlot, sHalfM, sNR = 's43', 's41', 's44'
SLOT = 49152


def b1_setup(a):
    t0, t1, t2, t3 = V(4), V(5), V(6), V(7)
    a('s_lshr_b32 %s, %s, 1' % (sT0, sW))
    a('s_and_b32 %s, %s, 1' % (sT1, sW))
    a('v_and_b32 %s, 31, v0' % t0)
    a('v_lshrrev_b32 %s, 5, v0' % t1)
    a('v_bfe_u32 %s, v0, 1, 3' % t2)
    a('s_lshl_b32 %s, %s, 13' % (sT2, sT0))
    for kk in range(4):
        a('v_add_u32 %s, %d, %s' % (t3, 2 * kk, t1))
        a('v_xor_b32 %s, %s, %s' % (t3, t3, t2))
        a('v_lshlrev_b32 %s, 4, %s' % (t3, t3))
        a('v_lshl_add_u32 %s, %s, 7, %s' % (t3, t0, t3))
        a('v_add_u32 %s, %s, %s' % (V(vRB + kk), sT2, t3))
    a('v_bfe_u32 %s, v0, 2, 2' % t0)
    a('v_lshl_add_u32 %s, %s, 3, %s' % (t1, t1, t0))
    a('v_lshlrev_b32 %s, 9, %s' % (t1, t1))
    a('v_bfe_u32 %s, v0, 4, 1' % t2)
    a('v_lshlrev_b32 %s, 5, %s' % (t2, t2))
    a('v_add_u32 %s, %s, %s' % (t1, t1, t2))
    a('v_and_b32 %s, 3, v0' % t2)
    a('v_lshl_add_u32 %s, %s, 3, %s' % (t1, t2, t1))
    a('s_lshl_b32 %s, %s, 8' % (sT2, sT1))
    a('s_add_u32 %s, %s, 16384' % (sT2, sT2))
    for t in range(4):
        a('v_xor_b32 %s, %d, %s' % (t3, t, t0))
        a('v_lshl_add_u32 %s, %s, 6, %s' % (t3, t3, t1))
        a('v_add_u32 %s, %s, %s' % (V(vRB + 4 + t), sT2, t3))
    a('v_lshrrev_b32 %s, 3, v0' % t0)
    a('v_mul_u32_u24 %s, 1280, %s' % (t0, t0))
    a('v_and_b32 %s, 7, v0' % t1)
    a('v_lshrrev_b32 %s, 4, v0' % t2)
    for p in range(2):
        a('v_add_u32 %s, %d, %s' % (t3, 4 * p, t2))
        a('v_xor_b32 %s, %s, %s' % (t3, t3, t1))
        a('v_lshl_add_u32 %s, %s, 4, %s' % (V(vXD + p), t3, t0))
    a('v_lshrrev_b32 %s, 5, v0' % t0)
    a('v_and_b32 %s, 31, v0' % t1)
    for p in range(2):
        a('v_add_u32 %s, %d, %s' % (t3, 2 * p, t0))
        a('v_lshlrev_b32 %s, 2, %s' % (t3, t3))
        a('v_xor_b32 %s, %s, %s' % (t3, t3, t1))
        a('v_lshlrev_b32 %s, 4, %s' % (t3, t3))
        a('v_lshl_add_u32 %s, %s, 13, %s' % (V(vWD + p), t0, t3))
    a('v_and_b32 %s, 15, v0' % t1)
    a('v_lshlrev_b32 %s, 4, %s' % (t1, t1))
    a('v_lshl_add_u32 %s, %s, 8, %s' % (t1, t0, t1))
    a('v_bfe_u32 %s, v0, 4, 1' % t2)
    a('v_lshl_add_u32 %s, %s, 12, %s' % (V(vEP), t2, t1))
    a('v_lshl_add_u32 %s, %s, 10, %s' % (V(vEP + 1), t2, t1))


def b1_dma():
    ops = [['s_add_u32 m0, %s, %s' % (sBase, sSlot)]]
    for j in range(4):
        ops.append(['s_add_u32 %s, %s, %d' % (sT0, sXo, j * 8 * 1280 - j * 1024),
                    'buffer_load_dwordx4 %s, %s, %s offen offset:%d lds' % (V(vXD + (j & 1)), XS, sT0, j * 1024)])
    for half in range(2):
        ops.append(['s_add_u32 m0, m0, %s' % sBase, 's_add_u32 m0, m0, 16384'] if half == 0 else
                   ['s_add_u32 m0, m0, 4096'])
        for j in range(4):
            q = 4 * half + j
            ops.append(['s_add_u32 %s, %s, %d' % (sT0, sWo, q * 2 * 8192 - j * 1024),
                        'buffer_load_dwordx4 %s, %s, %s offen offset:%d lds' % (V(vWD + (q & 1)), WSR, sT0, j * 1024)])
    ops.append(['s_add_u32 %s, %s, 128' % (sXo, sXo), 's_add_u32 %s, %s, 0x%x' % (sWo, sWo, 64 * 8192),
                's_add_u32 %s, %s, %d' % (sSlot, sSlot, SLOT), 's_cmp_eq_u32 %s, %d' % (sSlot, 3 * SLOT),
                's_cselect_b32 %s, 0, %s' % (sSlot, sSlot)])
    return ops


def b1_frags(kk):
    buf = kk & 1
    ops = []
    for t in range(4):
        if t < 2:
            ops.append('ds_read_b128 %s, %s offset:%d' % (V(XF + 8 * buf + 4 * t, 4), V(vRA + kk), 4096 * t))
        for s_ in range(2):
            ops.append('ds_read_b64_tr_b16 %s, %s offset:%d' % (
                V(WF + 16 * buf + 4 * t + 2 * s_, 2), V(vRA + 4 + t), (16 * kk + 4 * s_) * 512))
    return ops


PK = 128
vPA = 94
sPo, sPt, sPs, sPn, sPw, sPa = 's45', 's46', 's47', 's48', 's49', 's50'


def prev_store(n):
    ops = ['buffer_store_dwordx4 %s, %s, %s, %s offen offset:%d sc1' % (V(PK + 4 * n, 4), V(vPA), WS, sPo, 512 * (n & 1))]
    if n & 1:
        ops.append('s_add_u32 %s, %s, %s' % (sPo, sPo, sPs if n == 7 else sPt))
    return ops


def b1_main(a, vmode, done, opt):
    a('s_waitcnt vmcnt(12)')
    a('s_barrier')
    census(a)
    for x in b1_frags(0):
        a(x)
    for k in range(10):
        dma = b1_dma() if k < 8 else []
        for kk in range(4):
            buf = kk & 1
            nxt = b1_frags((kk + 1) & 3) if (k, kk) != (9, 3) else []
            adv = []
            if kk == 3 and k < 9:
                for r in range(8):
                    op = 'v_add_u32' if (k + 1) % 3 else 'v_subrev_u32'
                    adv.append('%s %s, %d, %s' % (op, V(vRA + r), SLOT if (k + 1) % 3 else 2 * SLOT, V(vRA + r)))
            a('s_waitcnt lgkmcnt(0)')
            for m in range(8):
                i, t = m >> 2, m & 3
                x, w = V(XF + 8 * buf + 4 * i, 4), V(WF + 16 * buf + 4 * t, 4)
                d = A(64 * i + 16 * t, 16)
                a('v_mfma_f32_32x32x16_bf16 %s, %s, %s, %s' % (
                    d, x if vmode else w, w if vmode else x, '0' if (k, kk) == (0, 0) else d))
                if kk < 3:
                    for x_ in nxt[2 * m:2 * m + 2]:
                        a(x_)
                    if m >= 2:
                        for x_ in (dma.pop(0) if dma else []):
                            a(x_)
                    if kk == 0 and m == 0 and k < 8:
                        sk = a.label('nps')
                        a('s_cmp_eq_u32 %s, 0' % sPn)
                        a('s_cbranch_scc1 %s' % sk)
                        for x_ in prev_store(2 * k) + prev_store(2 * k + 1):
                            a(x_)
                        a(sk + ':')
                elif k < 9:
                    if m < 2:
                        for x_ in adv[4 * m:4 * m + 4]:
                            a(x_)
                    if m == 3:
                        a('s_waitcnt vmcnt(%d)' % (12 if k < 8 else 0))
                        a('s_barrier')
                        if k == 8:
                            sk = a.label('nsg')
                            a('s_cmp_eq_u32 %s, 0' % sPn)
                            a('s_cbranch_scc1 %s' % sk)
                            arrive(a, sPw, sPa)
                            a(sk + ':')
                    if m >= 4:
                        for x_ in nxt[3 * (m - 4):3 * (m - 4) + 3]:
                            a(x_)
        assert not dma
    if opt.get('wstamps'):
        wstamp(a, 2, True)
    a('s_lshr_b32 %s, %s, 1' % (sT0, sW))
    a('s_lshl_b32 %s, %s, 2' % (sT1, sRB))
    a('s_lshl_b32 %s, %s, 1' % (sT0, sT0))
    a('s_add_u32 %s, %s, %s' % (sT0, sT0, sT1))
    a('s_lshl_b32 %s, %s, 5' % (sT0, sT0))
    a('s_and_b32 %s, %s, 1' % (sT1, sW))
    a('s_add_u32 %s, %s, %s' % (sT0, sT0, sT1))
    a('s_lshl_b32 %s, %s, 1' % (sT1, sCT))
    a('s_add_u32 %s, %s, %s' % (sT0, sT0, sT1))
    if vmode:
        a('s_lshl_b32 %s, %s, 14' % (sT0, sT0))
        a('s_add_u32 %s, %s, 0x%x' % (sPo, sT0, KV + 8192))
        a('s_movk_i32 %s, 2048' % sPt)
        a('s_mov_b32 %s, 0x%x' % (sPs, 0x80000 - 3 * 2048))
    else:
        a('s_cmp_eq_u32 %s, 2' % sKIND)
        a('s_cselect_b32 %s, 13, 14' % sT1)
        a('s_lshl_b32 %s, %s, %s' % (sT0, sT0, sT1))
        a('s_cmp_eq_u32 %s, 2' % sKIND)
        a('s_cselect_b32 %s, 0x%x, 0' % (sT1, QX))
        a('s_add_u32 %s, %s, %s' % (sPo, sT0, sT1))
        a('s_cmp_eq_u32 %s, 2' % sKIND)
        a('s_cselect_b32 %s, 0x40000, %s' % (sPs, sHalfM))
        a('s_sub_u32 %s, %s, %d' % (sPs, sPs, 3 * 1024))
        a('s_movk_i32 %s, 1024' % sPt)
    a('v_mov_b32 %s, %s' % (V(vPA), V(vEP + 1 if vmode else vEP)))
    n = 0
    for i in range(2):
        for t in range(4):
            for u in range(2):
                src = list(range(8 * u, 8 * u + 8)) if not vmode else \
                    list(range(4 * u, 4 * u + 4)) + list(range(8 + 4 * u, 12 + 4 * u))
                b = 16 + 8 * (n & 1)
                for j, r in enumerate(src):
                    a('v_accvgpr_read_b32 %s, %s' % (V(b + j), A(64 * i + 16 * t + r)))
                for j in range(4):
                    a('v_cvt_pk_bf16_f32 %s, %s, %s' % (V(PK + 4 * n + j), V(b + 2 * j), V(b + 1 + 2 * j)))
                n += 1
    a('s_branch %s' % done)


def verdict_point(a):
    skip = a.label('vp')
    a('s_cmp_lg_u32 %s, 0' % sRound)
    a('s_cbranch_scc1 %s' % skip)
    a('v_lshlrev_b32 v2, 2, v0')
    a('buffer_load_dword v2, v2, %s, 0 offen sc1' % DBG)
    a('s_waitcnt vmcnt(0)')
    verdict(a, 'v2')
    a(skip + ':')


def gen_b1(a, opt):
    srd(a, 12, 72, 2621440)
    b1_setup(a)
    a('s_mov_b32 %s, 0x80000' % sHalfM)
    a('s_mov_b32 %s, 0' % sRound)
    a('s_mov_b32 %s, 0' % sPn)
    a('v_mov_b32 %s, %s' % (V(vPA), V(vEP)))
    rnd, r2, r3, kv, go = (a.label(x) for x in ('b1round', 'b1r2', 'b1r3', 'b1kv', 'b1go'))
    a(rnd + ':')
    a('s_cmp_ge_u32 %s, 2' % sRound)
    a('s_cbranch_scc1 %s' % r2)
    a('s_mul_i32 %s, %s, 43691' % (sCT, sJ))
    a('s_lshr_b32 %s, %s, 18' % (sCT, sCT))
    a('s_mul_i32 %s, %s, 6' % (sT0, sCT))
    a('s_sub_u32 %s, %s, %s' % (sRB, sJ, sT0))
    a('s_mul_i32 %s, %s, 6' % (sT0, sRound))
    a('s_add_u32 %s, %s, %s' % (sRB, sRB, sT0))
    a('s_branch %s' % kv)
    a(r2 + ':')
    a('s_cmp_ge_u32 %s, 3' % sRound)
    a('s_cbranch_scc1 %s' % r3)
    a('s_lshr_b32 %s, %s, 2' % (sCT, sJ))
    a('s_and_b32 %s, %s, 3' % (sRB, sJ))
    a('s_cmp_ge_u32 %s, 128' % sJ)
    a('s_cbranch_scc1 %s' % (r3 + 'q'))
    a('s_add_u32 %s, %s, 12' % (sRB, sRB))
    a(kv + ':')
    a('s_lshr_b32 %s, %s, 4' % (sKIND, sCT))
    a('s_and_b32 %s, %s, 15' % (sCT, sCT))
    a('s_branch %s' % go)
    a(r3 + ':')
    a('s_mul_i32 %s, %s, 43691' % (sCT, sJ))
    a('s_lshr_b32 %s, %s, 19' % (sCT, sCT))
    a('s_mul_i32 %s, %s, 12' % (sT0, sCT))
    a('s_sub_u32 %s, %s, %s' % (sRB, sJ, sT0))
    a('s_add_u32 %s, %s, 4' % (sRB, sRB))
    a(r3 + 'q:')
    a('s_and_b32 %s, %s, 15' % (sCT, sCT))
    a('s_mov_b32 %s, 2' % sKIND)
    a(go + ':')
    a('s_cmp_eq_u32 %s, 0' % sKIND)
    a('s_cselect_b64 s[16:17], s[78:79], s[80:81]')
    a('s_cmp_eq_u32 %s, 2' % sKIND)
    a('s_cselect_b64 s[16:17], s[76:77], s[16:17]')
    a('s_and_b32 s17, s17, 0xffff')
    a('s_mov_b32 s18, 5242880')
    a('s_mov_b32 s19, 0x20000')
    a('s_lshl_b32 %s, %s, 12' % (sBase, sW))
    a('s_lshl_b32 %s, %s, 7' % (sT0, sRB))
    a('s_lshl_b32 %s, %s, 5' % (sT1, sW))
    a('s_add_u32 %s, %s, %s' % (sT0, sT0, sT1))
    a('s_mul_i32 %s, %s, 1280' % (sXo, sT0))
    a('s_lshl_b32 %s, %s, 17' % (sT0, sW))
    a('s_lshl_b32 %s, %s, 9' % (sT1, sCT))
    a('s_add_u32 %s, %s, %s' % (sWo, sT0, sT1))
    a('s_mov_b32 %s, 0' % sSlot)
    a('s_barrier')
    for k in range(2):
        for ops in b1_dma():
            for x in ops:
                a(x)
        if k == 0:
            for r in range(8):
                a('v_mov_b32 %s, %s' % (V(vRA + r), V(vRB + r)))
    vm, done = a.label('b1v'), a.label('b1done')
    a('s_cmp_eq_u32 %s, 1' % sKIND)
    a('s_cbranch_scc1 %s' % vm)
    b1_main(a, False, done, opt)
    a(vm + ':')
    b1_main(a, True, done, opt)
    a(done + ':')
    a('s_cmp_eq_u32 %s, 2' % sKIND)
    a('s_cselect_b32 %s, %d, 0' % (sT1, (D_Q - D_KV) * 4))
    a('s_add_u32 %s, %s, %d' % (sT1, sT1, D_KV * 4))
    a('s_and_b32 %s, %s, 12' % (sT2, sRB))
    a('s_add_u32 %s, %s, %s' % (sPw, sT1, sT2))
    a('s_and_b32 %s, %s, 3' % (sT2, sRB))
    a('s_lshl_b32 %s, %s, 3' % (sT2, sT2))
    a('s_lshl_b32 %s, 1, %s' % (sPa, sT2))
    verdict_point(a)
    now = a.label('b1now')
    a('s_mov_b32 %s, 1' % sPn)
    a('s_add_u32 %s, %s, 1' % (sRound, sRound))
    a('s_cmp_eq_u32 %s, 1' % sRound)
    a('s_cbranch_scc1 %s' % now)
    a('s_cmp_lt_u32 %s, 4' % sRound)
    a('s_cbranch_scc1 %s' % rnd)
    a(now + ':')
    for n in range(16):
        for x in prev_store(n):
            a(x)
    signal(a, sPw, sPa)
    a('s_mov_b32 %s, 0' % sPn)
    if opt.get('wstamps'):
        wstamp(a, 1, True)
    a('s_cmp_lt_u32 %s, 4' % sRound)
    a('s_cbranch_scc1 %s' % rnd)


def gen_workers(a, opt):
    a('s_sub_u32 %s, %s, 2' % (sT0, sGRP))
    a('s_lshl_b32 %s, %s, 5' % (sJ, sT0))
    a('s_add_u32 %s, %s, %s' % (sJ, sJ, sIDX))
    if opt.get('wstamps'):
        a('s_memrealtime s[92:93]')
    gen_b1(a, opt)
    if opt.get('b1_only'):
        a('s_branch L_end')
        return
    import bpart
    bpart.gen_b23(a, opt)


def wstamp(a, i, by_round=False):
    a('s_memrealtime s[94:95]')
    a('s_lshl_b32 %s, %s, 6' % (sT0, sJ))
    a('s_add_u32 %s, %s, 0x%x' % (sT0, sT0, STAMP + 0x200000))
    a('s_waitcnt lgkmcnt(0)')
    a('v_mov_b32 v250, s92')
    a('v_mov_b32 v251, s94')
    a('buffer_store_dword v250, off, %s, %s' % (WS, sT0))
    if by_round:
        a('s_lshl_b32 %s, %s, 3' % (sT1, sRound))
        a('s_add_u32 %s, %s, %s' % (sT0, sT0, sT1))
    a('buffer_store_dword v251, off, %s, %s offset:%d' % (WS, sT0, 4 * i))
    a('s_waitcnt vmcnt(0)') if not by_round else None
```

```python
import sys
from asmlib import Asm, Ins
from layout import *
import chain
from chain import sW, sGRP, sIDX, sSAFE, sT0, sT1, sT2, sT3, sSpin, WS, DBG, srd

NAME = 'concat_heads__linear_kernel_hedgehog__memory_aug_recurrent_mem_tr__prompt'
HEAD = open('cdna_kernels/%s.s.ref' % NAME).read().split('; Override launch')[0]


def calibrate(a):
    skip = a.label('nocal')
    a('s_cmp_lg_u32 %s, 2' % sGRP)
    a('s_cbranch_scc1 %s' % skip)
    a('s_or_b32 %s, %s, %s' % (sT0, sIDX, sW))
    a('s_cmp_lg_u32 %s, 0' % sT0)
    a('s_cbranch_scc1 %s' % skip)
    a('s_mov_b64 exec, 1')
    a('v_mov_b32 v1, 0')
    a('s_mov_b32 s32, 0x%x' % (MEMR + 6144))
    a('s_mov_b32 s33, 0x%x' % (MEMR + 8192 + 6144))
    a('s_mov_b32 s38, -1')
    a('s_mov_b32 s39, -1')
    a('buffer_store_dword v1, off, %s, s32 sc1' % WS)
    a('buffer_store_dword v1, off, %s, s33 sc1' % WS)
    a('s_waitcnt vmcnt(0)')
    a('s_memtime s[36:37]')
    for i in range(1, 5):
        for c in range(2):
            a('buffer_store_dword v1, off, %s, s%d offset:%d sc1' % (WS, 32 + c, 128 * i))
            a('s_waitcnt vmcnt(0) lgkmcnt(0)')
            a('s_mov_b32 s35, s36')
            a('s_memtime s[36:37]')
            a('s_waitcnt lgkmcnt(0)')
            a('s_sub_u32 s35, s36, s35')
            a('s_min_u32 s%d, s%d, s35' % (38 + c, 38 + c))
    a('s_sub_u32 s34, s38, s39')
    a('s_lshl_b32 s35, s38, 16')
    a('s_or_b32 s35, s35, s39')
    a('v_mov_b32 v1, s35')
    a('buffer_store_dword v1, off, %s, 0 offset:%d sc1' % (DBG, D_CAL * 4 + 4))
    a('s_cmp_gt_i32 s34, 0')
    a('s_cselect_b32 s34, 3, 2')
    a('v_mov_b32 v1, s34')
    a('buffer_store_dword v1, off, %s, 0 offset:%d sc1' % (DBG, D_CAL * 4))
    a('s_mov_b64 exec, -1')
    a(skip + ':')


def build(opt):
    a = Asm()
    k = NAME + '_kernel'
    a('.amdgcn_target "amdgcn-amd-amdhsa--gfx950"')
    a('.text')
    a('.globl %s' % k)
    a('.p2align 8')
    a('.type %s,@function' % k)
    a(k + ':')
    a('s_cmp_ge_u32 s2, 256')
    a('s_cbranch_scc1 L_end0')
    a('s_load_dwordx16 s[64:79], s[0:1], 0')
    a('s_load_dwordx8 s[80:87], s[0:1], 64')
    a('s_load_dwordx4 s[88:91], s[0:1], 96')
    a('s_getreg_b32 %s, hwreg(HW_REG_XCC_ID, 0, 4)' % sGRP)
    a('v_lshrrev_b32 v1, 6, v0')
    a('v_mov_b32 v9, v0')
    a('v_and_b32 v0, 63, v0')
    a('v_readfirstlane_b32 %s, v1' % sW)
    a('s_lshr_b32 %s, s2, 3' % sIDX)
    a('s_mov_b32 %s, 0' % sSAFE)
    if opt.get('force_safe'):
        a('s_mov_b32 %s, 8' % sGRP)
    a('s_waitcnt lgkmcnt(0)')
    srd(a, 4, 90, WS_BYTES)
    srd(a, 8, 88, 256)
    if not opt.get('nocodepf'):
        cp = a.label('cp')
        a('s_getpc_b64 s[12:13]')
        a(cp + ':')
        a('s_lshl_b32 %s, %s, 12' % (sT0, sIDX))
        a('v_lshl_add_u32 v10, v9, 7, %s' % sT0)
        a('v_cmp_gt_u32 vcc, 32, v9')
        a('v_cmp_gt_u32 s[14:15], %s, v10' % 'sCODE')
        a('s_and_b64 vcc, vcc, s[14:15]')
        a('v_mov_b32 v13, s13')
        a('v_add_co_u32 v12, s[14:15], s12, v10')
        a('v_addc_co_u32 v13, s[14:15], 0, v13, s[14:15]')
        a('s_and_saveexec_b64 s[14:15], vcc')
        a('s_cbranch_execz %s' % (cp + 'x'))
        a('global_load_dword v11, v[12:13], off')
        a(cp + 'x:')
        a('s_mov_b64 exec, s[14:15]')
        a.lines.insert(len(a.lines) - 11, Ins('s_mov_b32 s16, L_end - %s' % cp))
        for x in a.lines[-12:]:
            if isinstance(x, Ins):
                x.text = x.text.replace('sCODE', 's16')
    a('s_mov_b32 %s, 0' % chain.sCens)
    a('v_mov_b64 v[4:5], -1')
    a('v_mov_b64 v[6:7], -1')
    a('v_mov_b32 v8, 0')
    a('v_lshlrev_b32 v2, 4, v9')
    a('v_lshlrev_b32 v3, 2, v9')
    a('s_lshl_b32 %s, s2, 13' % sT0)
    a('s_add_u32 %s, %s, 0x%x' % (sT1, sT0, MEMR))
    a('s_add_u32 %s, %s, 0x%x' % (sT2, sT0, MEML))
    a('s_bfe_u32 %s, s2, 0x20005' % sT0)
    a('s_lshl_b32 %s, %s, 18' % (sT0, sT0))
    a('s_and_b32 %s, s2, 31' % sT3)
    a('s_mul_i32 %s, %s, 5120' % (sT3, sT3))
    a('s_add_u32 %s, %s, %s' % (sT0, sT0, sT3))
    a('s_add_u32 %s, %s, 0x%x' % (sT0, sT0, PART))
    a('s_cmp_lt_u32 s2, 128')
    a('s_cselect_b32 %s, %s, %s' % (sT2, sT2, sT0))
    for s_ in (sT1, sT2):
        a('buffer_store_dwordx4 v[4:7], v2, %s, %s offen sc1' % (WS, s_))
        a('s_add_u32 %s, %s, 4096' % (s_, s_))
        a('buffer_store_dword v4, v3, %s, %s offen sc1' % (WS, s_))
    a('s_lshl_b32 %s, s2, 7' % sT0)
    a('s_add_u32 %s, %s, 0x%x' % (sT0, sT0, FLG))
    a('v_and_b32 v3, 124, v3')
    a('buffer_store_dword v8, v3, %s, %s offen sc1' % (WS, sT0))
    a('s_cmp_lt_u32 %s, 8' % sGRP)
    a('s_cbranch_scc1 L_dispatch')
    a('L_fallback:')
    a('s_waitcnt vmcnt(0) lgkmcnt(0)')
    a('s_barrier')
    chain.census(a)
    a('s_mov_b32 %s, 1' % sSAFE)
    a('s_lshr_b32 %s, s2, 5' % sGRP)
    a('s_and_b32 %s, s2, 31' % sIDX)
    a('L_dispatch:')
    a('s_cmp_lt_u32 %s, 2' % sGRP)
    a('s_cbranch_scc1 L_chain')
    calibrate(a)
    if opt.get('chain_only'):
        a('s_waitcnt vmcnt(0)')
        a('s_barrier')
        chain.census(a)
        a('v_lshlrev_b32 v1, 2, v0')
        a('buffer_load_dword v1, v1, %s, 0 offen sc1' % DBG)
        a('s_waitcnt vmcnt(0)')
        chain.verdict(a, 'v1')
        a('s_branch L_end')
    else:
        import workers
        workers.gen_workers(a, opt)
    a('L_end0:')
    a('s_endpgm')
    chain.gen_chain(a, opt)
    a('L_end:')
    a('s_endpgm')
    body = a.finish()
    txt = HEAD + '; @launch grid=(256,1,1) block=(256,1,1) lds=163840\n' + body
    txt += '''.section .rodata,"a"
.p2align 6
.amdhsa_kernel %s
  .amdhsa_next_free_vgpr 512
  .amdhsa_next_free_sgpr 102
  .amdhsa_accum_offset 256
  .amdhsa_group_segment_fixed_size 0
  .amdhsa_kernarg_size 112
  .amdhsa_user_sgpr_count 2
  .amdhsa_user_sgpr_kernarg_segment_ptr 1
  .amdhsa_system_sgpr_workgroup_id_x 1
  .amdhsa_float_denorm_mode_32 3
.end_amdhsa_kernel
''' % k
    return txt, a.pads


if __name__ == '__main__':
    out = sys.argv[1]
    opt = {}
    for o in sys.argv[2:]:
        k_, _, v_ = o.partition('=')
        opt[k_] = int(v_) if v_ else True
    txt, pads = build(opt)
    open(out, 'w').write(txt)
    print('wrote', out, len(txt), 'bytes', txt.count('\n'), 'lines', pads, 'pads')
```

```python
import re

REG_RE = re.compile(r'\b([vas])\[(\d+):(\d+)\]|\b([vas])(\d+)\b|\b(vcc|exec|m0|scc)\b')


def regs_of(tok):
    out = set()
    for m in REG_RE.finditer(tok):
        if m.group(1):
            for i in range(int(m.group(2)), int(m.group(3)) + 1):
                out.add(m.group(1) + str(i))
        elif m.group(4):
            out.add(m.group(4) + m.group(5))
        else:
            out.add(m.group(6))
    return out


TRANS = ('v_exp_f32', 'v_log_f32', 'v_rcp_f32', 'v_rsq_f32', 'v_sqrt_f32', 'v_sin_f32', 'v_cos_f32',
         'v_rcp_iflag_f32')


class Ins:
    __slots__ = ('text', 'op', 'defs', 'uses', 'kind', 'passes', 'srcc', 'ab', 'states', 'data', 'wide')

    def __init__(self, text):
        self.text = text
        t = text.split(';')[0].strip()
        parts = t.split(None, 1)
        self.op = op = parts[0]
        rest = parts[1] if len(parts) > 1 else ''
        ops = [o.strip() for o in rest.split(',')] if rest else []
        self.defs, self.uses = set(), set()
        self.kind = 'other'
        self.passes = 0
        self.srcc = set()
        self.ab = set()
        self.data = set()
        self.wide = False
        self.states = 1
        if op == 's_nop':
            self.states = int(rest, 0) + 1
            self.kind = 'nop'
        elif op.startswith('v_mfma') or op.startswith('v_smfmac'):
            self.kind = 'mfma'
            self.passes = 8 if '32x32' in op else 4
            self.defs = regs_of(ops[0])
            self.ab = regs_of(ops[1]) | regs_of(ops[2])
            if op.startswith('v_smfmac'):
                self.srcc = set(self.defs)
                self.ab |= regs_of(ops[3].split()[0])
            else:
                self.srcc = regs_of(ops[3].split()[0])
            self.uses = self.ab | self.srcc
        elif op.startswith('v_'):
            self.kind = 'valu'
            if op.startswith('v_cmp'):
                self.defs = regs_of(ops[0])
                for o in ops[1:]:
                    self.uses |= regs_of(o)
                if op.startswith('v_cmpx'):
                    self.defs.add('exec')
            elif op.startswith('v_permlane') and 'swap' in op:
                self.defs = regs_of(ops[0]) | regs_of(ops[1])
                self.uses = set(self.defs)
            elif op.startswith(('v_add_co', 'v_sub_co', 'v_addc_co', 'v_subb_co', 'v_div_scale')):
                self.defs = regs_of(ops[0]) | regs_of(ops[1])
                for o in ops[2:]:
                    self.uses |= regs_of(o)
            else:
                self.defs = regs_of(ops[0])
                for o in ops[1:]:
                    self.uses |= regs_of(o)
                if op.startswith(('v_fmac', 'v_pk_fmac', 'v_writelane', 'v_dot2c')) or 'dpp' in op or 'row_' in rest \
                        or 'quad_perm' in rest:
                    self.uses |= self.defs
        elif op.startswith('ds_'):
            self.kind = 'ds'
            if op.startswith(('ds_read', 'ds_bpermute', 'ds_permute', 'ds_swizzle')) or '_rtn' in op:
                self.defs = regs_of(ops[0])
                for o in ops[1:]:
                    self.uses |= regs_of(o.split()[0])
            else:
                for o in ops:
                    self.uses |= regs_of(o.split()[0])
        elif op.startswith(('buffer_', 'global_')):
            self.kind = 'vmem'
            if op.startswith(('buffer_inv', 'buffer_wbl2')):
                pass
            elif ' lds' in (' ' + rest) or '_lds_' in op:
                for o in ops:
                    self.uses |= regs_of(o.split()[0])
                self.uses.add('m0')
                self.kind = 'vmem'
                self.data = set()
                self.wide = False
            elif 'load' in op:
                self.defs = regs_of(ops[0])
                for o in ops[1:]:
                    self.uses |= regs_of(o.split()[0])
            else:
                for o in ops:
                    self.uses |= regs_of(o.split()[0])
                di = 0 if op.startswith('buffer_') else 1
                self.data = regs_of(ops[di])
                self.wide = ('x3' in op or 'x4' in op or 'cmpswap_x2' in op)
                if 'atomic' in op and ' sc0' in (' ' + rest):
                    self.defs = regs_of(ops[0])
        elif op.startswith('s_'):
            self.kind = 'salu'
            if op.startswith(('s_cmp', 's_bitcmp')):
                self.defs = {'scc'}
                for o in ops:
                    self.uses |= regs_of(o)
            elif op.startswith(('s_waitcnt', 's_barrier', 's_branch', 's_cbranch', 's_endpgm', 's_sleep', 's_setprio')):
                if 'vcc' in op:
                    self.uses = {'vcc'}
                if 'exec' in op:
                    self.uses = {'exec'}
            else:
                if ops:
                    self.defs = regs_of(ops[0])
                for o in ops[1:]:
                    self.uses |= regs_of(o)
                if 'saveexec' in op:
                    self.defs.add('exec')


def need(prev, cur):
    n = 0
    isreg = lambda s: {r for r in s if r[0] in 'va' and r not in ('vcc',)}
    issg = lambda s: {r for r in s if r[0] == 's' and r != 'scc'} | ({'vcc'} if 'vcc' in s else set())
    if prev.kind == 'mfma':
        big = {4: 8, 8: 12}[prev.passes]
        mid = {4: 6, 8: 10}[prev.passes]
        if cur.kind == 'mfma':
            if prev.defs & cur.ab:
                n = max(n, big)
            ov = prev.defs & cur.srcc
            if ov and not (cur.srcc == prev.defs and cur.op == prev.op):
                n = max(n, mid)
            if (prev.defs & cur.defs) and not (cur.srcc == prev.defs and cur.op == prev.op):
                n = max(n, mid)
        elif cur.kind in ('valu', 'ds', 'vmem'):
            if prev.defs & (cur.uses | cur.defs):
                n = max(n, big)
            if cur.kind == 'valu' and (prev.srcc & cur.defs):
                n = max(n, {4: 3, 8: 7}[prev.passes])
    if prev.kind == 'valu':
        vd = isreg(prev.defs)
        if cur.kind == 'mfma' and (vd & cur.uses):
            n = max(n, 2)
        if cur.kind == 'mfma' and 'exec' in prev.defs:
            n = max(n, 4)
        if cur.kind == 'valu':
            if cur.op.startswith('v_permlane') and (vd & cur.uses):
                n = max(n, 2)
            if cur.op.startswith('v_permlane') and 'exec' in prev.defs:
                n = max(n, 4)
            if ('dpp' in cur.op or 'row_' in cur.text or 'quad_perm' in cur.text) and (vd & cur.uses):
                n = max(n, 2)
            if ('dpp' in cur.op or 'row_' in cur.text or 'quad_perm' in cur.text) and 'exec' in prev.defs:
                n = max(n, 5)
            if cur.op.startswith(('v_readlane', 'v_readfirstlane')) and (vd & cur.uses):
                n = max(n, 1)
            if cur.op.startswith(('v_readlane', 'v_readfirstlane', 'v_writelane')) and 'exec' in prev.defs:
                n = max(n, 4)
            if prev.op.startswith(TRANS) and not cur.op.startswith(TRANS) and (vd & cur.uses):
                n = max(n, 1)
            if prev.op.startswith(TRANS) and cur.op.startswith(TRANS) and (vd & cur.uses):
                n = max(n, 1)
            sd = issg(prev.defs)
            if sd & cur.uses:
                n = max(n, 4 if cur.op.startswith(('v_readlane', 'v_writelane', 'v_div_fmas')) else 2)
            if cur.op.startswith('v_cndmask') and 'vcc' in sd and (len(cur.text.split(',')) < 4 or 'vcc' in cur.text):
                n = max(n, 2)
            if 'op_sel' in prev.text or 'sdwa' in prev.op:
                if vd & (cur.uses | cur.defs):
                    n = max(n, 1)
        if cur.kind == 'vmem' and (issg(prev.defs) & cur.uses):
            n = max(n, 5)
        if cur.kind == 'salu' and (issg(prev.defs) & (cur.uses | cur.defs)):
            n = max(n, 1)
    if prev.kind == 'vmem' and prev.wide and prev.data:
        if cur.kind == 'valu' and (prev.data & cur.defs):
            n = max(n, 2)
        elif prev.data & cur.defs:
            n = max(n, 1)
    if prev.kind == 'salu' and 'm0' in prev.defs and 'm0' in cur.uses and cur.kind in ('vmem', 'ds'):
        n = max(n, 1)
    if prev.kind == 'salu' and 'exec' in prev.defs and cur.kind == 'valu' and (
            'dpp' in cur.op or 'row_' in cur.text):
        n = max(n, 0)
    return n


class Asm:
    def __init__(self):
        self.lines = []
        self.nlabel = 0

    def __call__(self, text):
        for ln in text.split('\n'):
            s = ln.strip()
            if not s:
                continue
            if s.startswith(';') or s.startswith('.') or s.split(';')[0].strip().endswith(':'):
                self.lines.append(s)
            else:
                self.lines.append(Ins(s))

    def label(self, stem):
        self.nlabel += 1
        return 'L_%s_%d' % (stem, self.nlabel)

    def merge_waits(self):
        out = []
        for x in self.lines:
            p = out[-1] if out else None
            if isinstance(x, Ins) and isinstance(p, Ins) and x.op == p.op == 's_waitcnt':
                c = {}
                for k, v in re.findall(r'(vmcnt|lgkmcnt)\((\d+)\)', p.text + ' ' + x.text):
                    c[k] = min(int(v), c.get(k, 99))
                out[-1] = Ins('s_waitcnt ' + ' '.join('%s(%d)' % kv for kv in sorted(c.items(), reverse=True)))
            else:
                out.append(x)
        self.lines = out

    def finish(self):
        self.merge_waits()
        out = []
        window = []
        pads = 0
        t = 0
        lastm = None
        for x in self.lines:
            if isinstance(x, str):
                out.append(x if x.endswith(':') or x.startswith('.') else '  ' + x)
                continue
            tx = t
            if x.kind == 'mfma' and lastm is not None:
                tx = max(tx, lastm[0] + lastm[1])
            req = 0
            for p, tp in reversed(window):
                n = need(p, x)
                if n:
                    req = max(req, tp + 1 + n - tx)
            if req > 0:
                req += tx - t
                while req > 0:
                    k = min(req, 16)
                    out.append('  s_nop %d' % (k - 1))
                    t += k
                    req -= k
                    pads += 1
                tx = max(tx, t)
            out.append('  ' + x.text)
            window.append((x, tx))
            if x.kind == 'mfma':
                lastm = (tx, x.passes)
            t = tx + x.states
            if x.op in ('s_branch', 's_endpgm', 's_setpc_b64'):
                window = []
                lastm = None
            window = [(p, tp) for p, tp in window if t - tp <= 24]
        self.pads = pads
        return '\n'.join(out) + '\n'
```

```python
import math
import struct
from layout import *
from chain import sW, sGRP, sIDX, sT0, sT1, sT2, sT3, sSpin, WS, DBG, srd, spin_check, rho, VQ
from workers import V, A, wait_dbg, wstamp, sJ

CBITS = struct.unpack('<I', struct.pack('<f', 128 ** -0.5 * math.log2(math.e)))[0]
sS, sH, sHG, sC, sO = 's33', 's34', 's35', 's36', 's37'


def poll(a, vaddr, soff, cmp_text, sleep):
    again, first = a.label('poll'), a.label('pollf')
    a('s_mov_b32 %s, 0' % sSpin)
    a('s_branch %s' % first)
    a(again + ':')
    a('s_sleep %d' % sleep)
    a(first + ':')
    a('buffer_load_dword v2, %s, %s, %s offen sc1' % (vaddr, WS, soff))
    spin_check(a)
    a('s_waitcnt vmcnt(0)')
    a(cmp_text)
    a('s_cbranch_vccnz %s' % again)


def gen_b2(a, opt):
    Q, K, VV, KM, VM = 16, 48, 80, 112, 128
    S00, S01, S11, S0 = 136, 140, 144, 148
    PX, PM, ONE, L, O = 156, 164, 172, 176, 184
    mf = lambda D, x, y, C: a('v_mfma_f32_16x16x32_bf16 %s, %s, %s, %s' % (V(D, 4), V(x, 4), V(y, 4), C))
    m16 = lambda D, x, y: a('v_mfma_f32_16x16x16_bf16 %s, %s, %s, %s' % (V(D, 4), V(x, 2), V(y, 2), V(D, 4)))
    a('L_b2:')
    a('s_sub_u32 %s, %s, 2' % (sT0, sGRP))
    a('s_mul_i32 %s, %s, 12' % (sT0, sT0))
    a('s_add_u32 %s, %s, %s' % (sT0, sT0, sIDX))
    a('s_sub_u32 %s, %s, 20' % (sT0, sT0))
    a('s_and_b32 %s, %s, 7' % (sHG, sT0))
    a('s_lshr_b32 %s, %s, 3' % (sS, sT0))
    a('s_lshl_b32 %s, %s, 2' % (sH, sHG))
    a('s_add_u32 %s, %s, %s' % (sH, sH, sW))
    a('s_mov_b32 %s, 0x%x' % (sC, CBITS))
    a('v_lshlrev_b32 v1, 4, v0')
    a('v_lshrrev_b32 v4, 4, v0')
    rho(a, 'v5', 'v6')
    a('v_lshl_add_u32 v5, v4, 3, v5')
    a('v_lshlrev_b32 v5, 4, v5')
    a('v_lshlrev_b32 v6, 3, v0')
    a('v_and_b32 v7, 1, v0')
    a('v_lshlrev_b32 v7, 12, v7')
    a('v_and_b32 v8, 15, v0')
    for r in range(4):
        a('v_lshl_add_u32 v9, v4, 2, %d' % r)
        a('v_cmp_le_u32 s[%d:%d], v9, v8' % (56 + 2 * r, 57 + 2 * r))
    a('v_mov_b32 v10, 0xff800000')
    for r in range(4):
        a('v_mov_b32 %s, 0x3f803f80' % V(ONE + r))
    for r in (PX + 2, PX + 3, PM + 1, PM + 2, PM + 5, PM + 6):
        a('v_mov_b32 %s, 0' % V(r))
    loop = a.label('b2loop')
    a(loop + ':')
    a('s_lshr_b32 %s, %s, 4' % (sT2, sS))
    a('s_add_u32 %s, %s, %d' % (sT3, sT2, D_Q))
    a('s_add_u32 %s, %s, %d' % (sT2, sT2, D_KV))
    a('s_bfe_u32 %s, %s, 0x20002' % (sT1, sS))
    a('s_lshl_b32 %s, %s, 3' % (sT1, sT1))
    a('s_or_b32 %s, %s, 0x80000' % (sT1, sT1))
    wait_dbg(a, [(sT2, 32, sT1), (sT3, 16, sT1)])
    a('s_lshl_b32 %s, %s, 5' % (sT0, sS))
    a('s_add_u32 %s, %s, %s' % (sT0, sT0, sH))
    a('s_lshl_b32 %s, %s, 12' % (sO, sT0))
    a('s_add_u32 %s, %s, 0x%x' % (sO, sO, KMVM))
    a('s_lshl_b32 %s, %s, 13' % (sT1, sT0))
    a('s_add_u32 %s, %s, 0x%x' % (sT1, sT1, QX))
    a('s_lshl_b32 %s, %s, 14' % (sT0, sT0))
    for base, reg in ((sT0, K), (sT1, Q), (None, VV)):
        if base is None:
            base = sT0
        for j in range(8):
            a('buffer_load_dwordx4 %s, v1, %s, %s offen offset:%d sc1' % (V(reg + 4 * j, 4), WS, base, 1024 * (j & 3)))
            if j & 3 == 3:
                a('s_add_u32 %s, %s, 4096' % (base, base))
    a('s_waitcnt vmcnt(8)')
    for D, kt, qt in ((S00, 0, 0), (S01, 0, 1), (S11, 1, 1)):
        for ks in range(4):
            mf(D, K + 16 * kt + 4 * ks, Q + 16 * qt + 4 * ks, '0' if ks == 0 else V(D, 4))
    a('s_lshl_b32 %s, %s, 7' % (sT0, sH))
    a('s_add_u32 %s, %s, 0x%x' % (sT0, sT0, FLG))
    for D in (S00, S11):
        for r in range(4):
            a('v_cndmask_b32 %s, v10, %s, s[%d:%d]' % (V(D + r), V(D + r), 56 + 2 * r, 57 + 2 * r))
    a('v_max3_f32 v11, %s, %s, %s' % (V(S00), V(S00 + 1), V(S00 + 2)))
    a('v_max_f32 v11, v11, %s' % V(S00 + 3))
    a('v_max3_f32 v12, %s, %s, %s' % (V(S01), V(S01 + 1), V(S01 + 2)))
    a('v_max3_f32 v12, v12, %s, %s' % (V(S01 + 3), V(S11)))
    a('v_max3_f32 v12, v12, %s, %s' % (V(S11 + 1), V(S11 + 2)))
    a('v_max_f32 v12, v12, %s' % V(S11 + 3))
    poll(a, 'v7', sT0, 'v_cmp_ge_u32 vcc, %s, v2' % sS, 1)
    if opt.get('tstamps'):
        a('s_memrealtime s[66:67]')
    for ks in range(4):
        a('buffer_load_dwordx4 %s, v5, %s, %s offen offset:%d sc1' % (V(KM + 4 * ks, 4), WS, sO, 512 * ks))
    for p in range(4):
        a('buffer_load_dwordx2 %s, v6, %s, %s offen offset:%d sc1' % (V(VM + 2 * p, 2), WS, sO, 2048 + 512 * p))
    for ks in range(4):
        a('s_waitcnt vmcnt(%d)' % (7 - ks))
        for qt in range(2):
            mf(S0 + 4 * qt, KM + 4 * ks, Q + 16 * qt + 4 * ks, '0' if ks == 0 else V(S0 + 4 * qt, 4))
    if opt.get('tstamps'):
        a('s_memrealtime s[68:69]')
    a('s_lshl_b32 %s, %s, 18' % (sT0, sS))
    a('s_lshl_b32 %s, %s, 12' % (sT1, sH))
    a('s_add_u32 %s, %s, %s' % (sT0, sT0, sT1))
    a('s_add_u32 %s, %s, 0x%x' % (sT0, sT0, OB))
    a('s_add_u32 %s, %s, 0x20000' % (sT1, sT0))
    for qt in range(2):
        a('v_max3_f32 %s, %s, %s, %s' % (V(11 + qt), V(11 + qt), V(S0 + 4 * qt), V(S0 + 4 * qt + 1)))
    for op in ('v_permlane32_swap_b32', 'v_permlane16_swap_b32'):
        for qt in range(2):
            a('v_mov_b32 %s, %s' % (V(13 + qt), V(11 + qt)))
        for qt in range(2):
            a('%s %s, %s' % (op, V(11 + qt), V(13 + qt)))
        for qt in range(2):
            a('v_max_f32 %s, %s, %s' % (V(11 + qt), V(11 + qt), V(13 + qt)))
    for qt in range(2):
        a('v_mul_f32 %s, %s, %s' % (V(11 + qt), sC, V(11 + qt)))
    vals = [(S00 + r, 0) for r in range(4)] + [(S0, 0), (S0 + 1, 0)] + \
           [(S01 + r, 1) for r in range(8)] + [(S0 + 4, 1), (S0 + 5, 1)]
    for r, qt in vals:
        a('v_fma_f32 %s, %s, %s, -%s' % (V(r), V(r), sC, V(11 + qt)))
    for r, qt in vals:
        a('v_exp_f32 %s, %s' % (V(r), V(r)))
    cv = lambda d, x: a('v_cvt_pk_bf16_f32 %s, %s, %s' % (V(d), V(x), V(x + 1)))
    cv(PX, S00)
    cv(PX + 1, S00 + 2)
    for j in range(4):
        cv(PX + 4 + j, S01 + 2 * j)
    for qt in range(2):
        cv(PM + 4 * qt, S0 + 4 * qt)
        cv(PM + 4 * qt + 3, S0 + 4 * qt)
    a('s_waitcnt vmcnt(0)')
    for qt in range(2):
        mf(L + 4 * qt, ONE, PX + 4 * qt, '0')
        for et in range(8):
            mf(O + 32 * qt + 4 * et, VV + 4 * et, PX + 4 * qt, '0')
        m16(L + 4 * qt, ONE, PM + 4 * qt)
        for et in range(8):
            m16(O + 32 * qt + 4 * et, VM + 2 * (et & 3), PM + 4 * qt + 2 * (et >> 2))
    for qt in range(2):
        a('v_rcp_f32 %s, %s' % (V(L + 4 * qt), V(L + 4 * qt)))
    for qt in range(2):
        for p in range(4):
            D = O + 32 * qt + 8 * p
            for r in range(8):
                a('v_mul_f32 %s, %s, %s' % (V(D + r), V(D + r), V(L + 4 * qt)))
            for j in range(4):
                cv(D + j, D + 2 * j)
            a('buffer_store_dwordx4 %s, v1, %s, %s offen offset:%d sc1' % (V(D, 4), WS, (sT0, sT1)[qt], 1024 * p))
    if opt.get('tstamps'):
        a('s_memrealtime s[70:71]')
    a('s_lshl_b32 %s, %s, 8' % (sT0, sS))
    a('s_lshl_b32 %s, %s, 5' % (sT1, sHG))
    a('s_add_u32 %s, %s, %s' % (sT0, sT0, sT1))
    a('s_add_u32 %s, %s, 0x%x' % (sT0, sT0, FLG2))
    a('s_waitcnt vmcnt(0)')
    a('s_barrier')
    if opt.get('tstamps'):
        a('s_memrealtime s[72:73]')
    nf = a.label('b2nf')
    a('s_cmp_lg_u32 %s, 0' % sW)
    a('s_cbranch_scc1 %s' % nf)
    a('buffer_store_dword v10, off, %s, %s sc1' % (WS, sT0))
    a(nf + ':')
    a('s_add_u32 %s, %s, 6' % (sS, sS))
    a('s_cmp_lt_u32 %s, 64' % sS)
    a('s_cbranch_scc1 %s' % loop)
    if opt.get('tstamps'):
        a('s_waitcnt lgkmcnt(0)')
        for k in range(4):
            a('v_mov_b32 v%d, s%d' % (248 + k, 66 + 2 * k))
        a('s_lshl_b32 %s, %s, 6' % (sT0, sJ))
        a('s_add_u32 %s, %s, 0x%x' % (sT0, sT0, STAMP + 0x210000))
        a('buffer_store_dwordx4 v[248:251], off, %s, %s' % (WS, sT0))
    if opt.get('wstamps'):
        wstamp(a, 12)
    a('s_branch L_end')


def gen_b3(a, opt):
    OBF, ACC = 16, 144
    sHS, sPar, sM0 = 's33', 's34', 's35'
    a('L_b3:')
    srd(a, 12, 82, 5242880)
    srd(a, 16, 86, 5242880)
    a('v_lshrrev_b32 v4, 2, v0')
    a('v_mul_u32_u24 v4, 1280, v4')
    a('v_and_b32 v5, 3, v0')
    a('v_lshl_add_u32 v4, v5, 4, v4')
    a('s_mul_i32 %s, %s, %d' % (sT2, sW, 1024 * 1280))
    a('s_lshl_b32 %s, %s, 6' % (sT1, sIDX))
    a('s_add_u32 %s, %s, %s' % (sT2, sT2, sT1))
    a('s_lshl_b32 %s, %s, 15' % (sM0, sW))
    q = VQ(a)

    def issue(i):
        a('s_add_u32 m0, %s, %d' % (sM0, (i % 8) * 4096))
        for j in range(4):
            a('s_add_u32 %s, %s, 0x%x' % (sT0, sT2, (64 * i + 16 * j) * 1280 - 1024 * j))
            a('buffer_load_dwordx4 v4, s[12:15], %s offen offset:%d lds' % (sT0, 1024 * j))
        q.add(i, 4)
    for i in range(8):
        issue(i)
    a('v_lshrrev_b32 v6, 2, v0')
    a('v_lshlrev_b32 v6, 6, v6')
    a('v_lshl_add_u32 v6, v5, 4, v6')
    a('v_add_u32 v6, %s, v6' % sM0)
    a('v_lshlrev_b32 v1, 4, v0')
    for i in range(16):
        q.wait(i)
        for pp in range(2):
            for tau in range(2):
                for s_ in range(2):
                    r = 8 * (2 * i + pp) + 4 * tau + 2 * s_
                    a('ds_read_b64_tr_b16 %s, v6 offset:%d' % (
                        A(r, 2), (i % 8) * 4096 + pp * 2048 + s_ * 1024 + tau * 8))
        a('s_waitcnt lgkmcnt(0)')
        if i + 8 < 16:
            issue(i + 8)
    a('v_and_b32 v7, 1, v0')
    a('s_lshl_b32 %s, %s, 6' % (sT0, sW))
    a('v_lshl_add_u32 v7, v7, 5, %s' % sT0)
    a('v_and_b32 v8, 15, v0')
    a('v_mul_u32_u24 v8, 2560, v8')
    a('v_lshrrev_b32 v9, 4, v0')
    a('v_lshl_add_u32 v8, v9, 4, v8')
    a('s_lshl_b32 %s, %s, 6' % (sT0, sIDX))
    a('s_add_u32 %s, %s, 1280' % (sT0, sT0))
    a('v_add_u32 v8, %s, v8' % sT0)
    a('s_lshl_b32 %s, %s, 11' % (sT0, sW))
    a('v_add_u32 v9, %s, v1' % sT0)
    a('s_sub_u32 %s, %s, 2' % (sHS, sGRP))
    a('s_barrier')
    if opt.get('wstamps'):
        wstamp(a, 13)
    loop, quart, red = a.label('b3loop'), a.label('b3q'), a.label('b3red')
    a('s_mov_b64 s[44:45], -1')
    a('v_mov_b32 v10, v1')

    def task_head():
        a('s_lshr_b32 %s, %s, 1' % (sT0, sHS))
        a('s_lshl_b32 %s, %s, 8' % (sT0, sT0))
        a('s_add_u32 %s, %s, 0x%x' % (sT0, sT0, FLG2))
        a('s_lshl_b32 %s, %s, 17' % (sT2, sHS))
        a('s_lshl_b32 %s, %s, 15' % (sT1, sW))
        a('s_add_u32 %s, %s, %s' % (sT2, sT2, sT1))
        a('s_add_u32 %s, %s, 0x%x' % (sT2, sT2, OB))
        poll(a, 'v7', sT0, 'v_cmp_eq_u32 vcc, 0, v2', 1)
        if opt.get('tstamps'):
            a('s_memrealtime s[66:67]')
    a(loop + ':')
    task_head()
    for p in range(32):
        a('buffer_load_dwordx4 %s, v1, %s, %s offen offset:%d sc1' % (V(OBF + 4 * p, 4), WS, sT2, 1024 * (p & 3)))
        if p & 3 == 3:
            a('s_add_u32 %s, %s, 4096' % (sT2, sT2))
    for p in range(32):
        a('s_waitcnt vmcnt(%d)' % (31 - p))
        for tau in range(2):
            D = V(ACC + 4 * tau, 4)
            a('v_mfma_f32_16x16x32_bf16 %s, %s, %s, %s' % (D, A(8 * p + 4 * tau, 4), V(OBF + 4 * p, 4), '0' if p == 0 else D))
    a('s_nop 7')
    a(red + ':')
    if opt.get('tstamps'):
        a('s_memrealtime s[70:71]')
    w0, nx = a.label('b3w0'), a.label('b3nx')
    a('s_mul_i32 %s, %s, %d' % (sT0, sHS, 16 * 2560))
    a('s_cmp_eq_u32 %s, 0' % sW)
    a('s_cbranch_scc1 %s' % w0)
    a('ds_write_b128 v9, %s' % V(ACC, 4))
    a('ds_write_b128 v9, %s offset:1024' % V(ACC + 4, 4))
    a('s_waitcnt lgkmcnt(0)')
    a('s_barrier')
    a('s_branch %s' % nx)
    a(w0 + ':')
    a('s_barrier')
    for j in range(6):
        a('ds_read_b128 %s, v9 offset:%d' % (V(OBF + 4 * j, 4), 2048 + 1024 * j))
    for w in range(3):
        a('s_waitcnt lgkmcnt(%d)' % (4 - 2 * w))
        for r in range(8):
            a('v_add_f32 %s, %s, %s' % (V(ACC + r), V(ACC + r), V(OBF + 8 * w + r)))
    for j in range(4):
        a('v_cvt_pk_bf16_f32 %s, %s, %s' % (V(ACC + j), V(ACC + 2 * j), V(ACC + 2 * j + 1)))
    a('s_mov_b64 exec, s[44:45]')
    a('buffer_store_dwordx4 %s, v8, s[16:19], %s offen' % (V(ACC, 4), sT0))
    a('s_mov_b64 exec, -1')
    a(nx + ':')
    if opt.get('tstamps'):
        a('s_memrealtime s[72:73]')
    a('v_xor_b32 v9, 0x2000, v9')
    fin = a.label('b3fin')
    a('s_cmp_ge_u32 %s, 126' % sHS)
    a('s_cbranch_scc1 %s' % fin)
    a('s_add_u32 %s, %s, 2' % (sHS, sHS))
    a('s_cmp_lg_u32 s44, -1')
    a('s_cbranch_scc1 %s' % quart)
    a('s_add_u32 %s, %s, 2' % (sHS, sHS))
    a('s_cmp_lt_u32 %s, 124' % sHS)
    a('s_cbranch_scc1 %s' % loop)
    a('s_sub_u32 %s, %s, 2' % (sT0, sGRP))
    a('s_lshr_b32 %s, %s, 1' % (sHS, sT0))
    a('s_add_u32 %s, %s, 124' % (sHS, sHS))
    a('s_and_b32 %s, %s, 1' % (sT0, sT0))
    a('s_mov_b32 s44, 0x00ff00ff')
    a('s_cmp_eq_u32 %s, 1' % sT0)
    a('s_cselect_b32 s44, 0xff00ff00, s44')
    a('s_mov_b32 s45, s44')
    a('s_lshl_b32 %s, %s, 7' % (sT0, sT0))
    a('v_and_b32 v10, 0x370, v1')
    a('v_add_u32 v10, %s, v10' % sT0)
    a('v_bfe_u32 v11, v0, 3, 1')
    a('v_lshl_add_u32 v10, v11, 10, v10')
    a(quart + ':')
    task_head()
    for p in range(16):
        a('buffer_load_dwordx4 %s, v10, %s, %s offen offset:%d sc1' % (V(OBF + 4 * p, 4), WS, sT2, 2048 * (p & 1)))
        if p & 1:
            a('s_add_u32 %s, %s, 4096' % (sT2, sT2))
    for p in range(16):
        a('s_waitcnt vmcnt(%d)' % (15 - p))
        for k in range(4):
            D = V(ACC + 4 * k, 4)
            a('v_mfma_f32_16x16x32_bf16 %s, %s, %s, %s' % (D, A(16 * p + 4 * k, 4), V(OBF + 4 * p, 4), '0' if p == 0 else D))
    a('s_mov_b32 s46, 0xff00ff00')
    a('s_mov_b32 s47, 0xff00ff00')
    for r in range(8):
        a('v_cndmask_b32 %s, %s, %s, s[46:47]' % (V(ACC + r), V(ACC + r), V(ACC + 8 + r)))
    for r in range(8):
        a('v_add_f32_dpp %s, %s, %s row_ror:8 row_mask:0xf bank_mask:0xf' % (V(ACC + r), V(ACC + r), V(ACC + r)))
    a('s_branch %s' % red)
    a(fin + ':')
    if opt.get('tstamps'):
        a('s_waitcnt lgkmcnt(0)')
        for k in range(4):
            a('v_mov_b32 v%d, s%d' % (248 + k, 66 + 2 * k))
        a('s_lshl_b32 %s, %s, 6' % (sT0, sJ))
        a('s_add_u32 %s, %s, 0x%x' % (sT0, sT0, STAMP + 0x210000))
        a('buffer_store_dwordx4 v[248:251], off, %s, %s' % (WS, sT0))
    if opt.get('wstamps'):
        wstamp(a, 14)
    a('s_branch L_end')


def gen_b23(a, opt):
    a('s_cmp_ge_u32 %s, 6' % sGRP)
    a('s_cbranch_scc1 L_parta')
    a('s_cmp_ge_u32 %s, 20' % sIDX)
    a('s_cbranch_scc1 L_b2')
    gen_b3(a, opt)
    gen_b2(a, opt)
    a('L_parta:')
    if opt.get('noa'):
        a('s_branch L_end')
    else:
        import apart
        apart.gen_a(a, opt)
```

```python
from layout import *

L_IMG = 0
L_QT = L_IMG
L_KT = 10240
RP = 288
L_OI = 14336
L_KX = 16384
L_W = 32768
UB = 0

SPIN = 1 << 17


def T(i, n=1):
    return 'v%d' % (16 + i) if n == 1 else 'v[%d:%d]' % (16 + i, 16 + i + n - 1)


REG_TILES = [('Q', c) for c in range(9)] + [('K', c) for c in range(10)] + [('V', c) for c in range(5, 10)] + \
            [('O', 0), ('O', 1), ('O', 2)]
LDS_TILES = [('V', c) for c in range(5)] + [('Q', 9), ('O', 3), ('O', 4)]
TILES = REG_TILES + LDS_TILES


def tile_reg(tile):
    i = REG_TILES.index(tile)
    return ('a', 16 * i) if i < 16 else ('v', 80 + 16 * (i - 16))


def slot(tile, half):
    f, b = tile_reg(tile)
    b += 8 * half
    return '%s[%d:%d]' % (f, b, b + 7)


def lds_off(tile, half):
    pos = TILES.index(tile) % 8
    return pos * 16384 + half * 2048


class VQ:
    def __init__(self, a):
        self.a, self.q = a, []

    def add(self, tag, n=1):
        self.q += [tag] * n
        assert len(self.q) <= 63, len(self.q)

    def wait(self, tag):
        last = max(i for i, t in enumerate(self.q) if t == tag)
        n = len(self.q) - 1 - last
        self.a('s_waitcnt vmcnt(%d)' % n)
        self.q = self.q[last + 1:]


sW, sGRP, sIDX, sSAFE = 's28', 's29', 's30', 's31'
sS, sMemL, sMemRin, sPubL, sPubR = 's32', 's33', 's34', 's35', 's36'
sP = ['s37', 's38', 's39', 's40', 's41']
sOwn0, sOwn1, sVx, sKxN, sVm0, sKM, sFlag, sOwner, sC, sSpin = ['s%d' % i for i in range(42, 52)]
sT0, sT1, sT2, sT3 = 's52', 's53', 's54', 's55'
sWarm, sW16, sN8 = 's56', 's57', 's[58:59]'
sChk = 's97'
sOnes = 's[22:23]'
sLine = 's96'
sM0N = 's60'
sSig = 's61'
sFl3, sFlag3, sOOB, sLim = 's62', 's20', 's21', 's19'
sRetry = 's63'
WS, DBG = 's[4:7]', 's[8:11]'


def srd(a, d, p, nbytes):
    a('s_mov_b32 s%d, s%d' % (d, p))
    a('s_and_b32 s%d, s%d, 0xffff' % (d + 1, p + 1))
    a('s_mov_b32 s%d, 0x%x' % (d + 2, nbytes))
    a('s_mov_b32 s%d, 0x20000' % (d + 3))


sCens = 's27'


def census(a):
    skip = a.label('cens')
    a('s_or_b32 %s, %s, %s' % (sT0, sW, sCens))
    a('s_mov_b32 %s, 1' % sCens)
    a('s_cmp_lg_u32 %s, 0' % sT0)
    a('s_cbranch_scc1 %s' % skip)
    a('s_lshl_b32 %s, 1, %s' % (sT0, sIDX))
    a('s_lshl_b32 %s, %s, 3' % (sT1, sGRP))
    a('s_cmp_lt_u32 %s, 8' % sGRP)
    a('s_cselect_b32 %s, %s, 0' % (sT0, sT0))
    a('s_cselect_b32 %s, %s, 0' % (sT1, sT1))
    a('s_mov_b64 exec, 1')
    a('v_mov_b32 v14, 1')
    a('v_mov_b32 v15, %s' % sT0)
    a('buffer_atomic_add_x2 v[14:15], off, %s, %s sc1' % (DBG, sT1))
    a('s_mov_b64 exec, -1')
    a(skip + ':')


def verdict(a, vreg):
    ok, again = a.label('vok'), a.label('vagain')
    a('s_mov_b32 %s, 0' % sSpin)
    a(again + ':')
    a('v_cmp_eq_u32 vcc, -1, %s' % vreg)
    a('s_and_b32 %s, vcc_lo, 0xaaaa' % sT0)
    a('s_cmp_eq_u32 %s, 0xaaaa' % sT0)
    a('s_cbranch_scc1 %s' % ok)
    a('s_mov_b32 %s, 0' % sT0)
    for i in range(8):
        a('v_readlane_b32 %s, %s, %d' % (sT1, vreg, 2 * i))
        a('s_add_u32 %s, %s, %s' % (sT0, sT0, sT1))
    a('s_cmp_lt_u32 %s, 256' % sT0)
    a('s_cbranch_scc1 %s' % (again + 'w'))
    a('s_cmp_lg_u32 %s, 0' % sSAFE)
    a('s_cbranch_scc1 %s' % ok)
    a('s_branch L_fallback')
    a(again + 'w:')
    a('s_add_u32 %s, %s, 1' % (sSpin, sSpin))
    a('s_cmp_gt_u32 %s, %d' % (sSpin, SPIN))
    a('s_cbranch_scc1 L_end')
    a('v_lshlrev_b32 %s, 2, v0' % vreg)
    a('buffer_load_dword %s, %s, %s, 0 offen sc1' % (vreg, vreg, DBG))
    a('s_waitcnt vmcnt(0)')
    a('s_branch %s' % again)
    a(ok + ':')


def rho(a, dst, tmp):
    a('v_bfe_u32 %s, v0, 2, 2' % tmp)
    a('v_and_b32 %s, 1, v0' % dst)
    a('v_lshl_add_u32 %s, %s, 1, %s' % (dst, tmp, dst))


def spin_check(a):
    a('s_add_u32 %s, %s, 1' % (sSpin, sSpin))
    a('s_cmp_gt_u32 %s, %d' % (sSpin, SPIN))
    a('s_cbranch_scc1 L_end')


def gen_chain(a, opt):
    stamps = opt.get('stamps')
    a('L_chain:')
    if stamps:
        a('s_memrealtime s[24:25]')
    srd(a, 12, 76, 5242880)
    srd(a, 16, 78, 5242880)
    srd(a, 20, 80, 5242880)
    srd(a, 92, 82, 5242880)
    SRD = {'Q': 's[12:15]', 'K': 's[16:19]', 'V': 's[20:23]', 'O': 's[92:95]'}
    vWq, vWo, vT, vTo = T(40), T(42), T(44), T(46)
    t0, t1, t2 = T(50), T(51), T(52)
    T41, T43, T45, T47 = T(41), T(43), T(45), T(47)
    a('v_lshrrev_b32 %s, 5, v0' % t0)
    a('v_bfe_u32 %s, v0, 4, 1' % t1)
    a('v_lshl_add_u32 %s, %s, 3, %s' % (t0, t0, t1))
    a('v_lshlrev_b32 %s, 13, %s' % (t0, t0))
    a('s_lshl_b32 %s, %s, 8' % (sT0, sIDX))
    a('s_lshl_b32 %s, %s, 17' % (sT1, sW))
    a('s_add_u32 %s, %s, %s' % (sT0, sT0, sT1))
    a('v_lshrrev_b32 %s, 4, v0' % t1)
    a('v_and_b32 %s, 15, v0' % t2)
    for p, dst in enumerate((vWq, T41)):
        a('v_add_u32 %s, %d, %s' % (dst, 4 * p, t1))
        a('v_lshlrev_b32 %s, 1, %s' % (dst, dst))
        a('v_xor_b32 %s, %s, %s' % (dst, dst, t2))
        a('v_lshl_add_u32 %s, %s, 4, %s' % (dst, dst, t0))
        a('v_add_u32 %s, %s, %s' % (dst, sT0, dst))
    a('s_mul_i32 %s, %s, %d' % (sT0, sIDX, 128 * 1280))
    a('s_mul_i32 %s, %s, 640' % (sT1, sGRP))
    a('s_add_u32 %s, %s, %s' % (sT0, sT0, sT1))
    a('s_mul_i32 %s, %s, %d' % (sT1, sW, 32 * 1280))
    a('s_add_u32 %s, %s, %s' % (sT0, sT0, sT1))
    a('v_bfe_u32 %s, v0, 4, 1' % t0)
    a('v_lshlrev_b32 %s, 3, %s' % (t1, t0))
    a('v_lshrrev_b32 %s, 5, v0' % t2)
    a('v_lshl_add_u32 %s, %s, 1, %s' % (t1, t2, t1))
    a('v_bfe_u32 %s, v0, 3, 1' % t2)
    a('v_add_u32 %s, %s, %s' % (t1, t1, t2))
    a('v_mul_u32_u24 %s, 1280, %s' % (t1, t1))
    a('v_and_b32 %s, 7, v0' % t2)
    for p, dst in enumerate((vWo, T43)):
        a('v_add_u32 %s, %d, %s' % (dst, 2 * p, t0))
        a('v_lshlrev_b32 %s, 1, %s' % (dst, dst))
        a('v_xor_b32 %s, %s, %s' % (dst, dst, t2))
        a('v_lshl_add_u32 %s, %s, 4, %s' % (dst, dst, t1))
        a('v_add_u32 %s, %s, %s' % (dst, sT0, dst))
    a('s_mul_i32 %s, %s, %d' % (sSig, sGRP, 5 * 524288))
    a('s_lshl_b32 %s, %s, 12' % (sM0N, sW))
    a('s_add_u32 %s, %s, 0x%x' % (sM0N, sM0N, L_W))

    q = VQ(a)

    def issue(i):
        tile = TILES[i]
        k = tile[0]
        a('s_add_u32 m0, %s, %d' % (sM0N, (i % 8) * 16384))
        for j in range(4):
            if k in 'QKV':
                c = tile[1]
                lit = c * 524288 + j * (2 * 8192 - 1024)
                if c < 5:
                    a('s_add_u32 %s, %s, 0x%x' % (sT0, sSig, lit))
                else:
                    a('s_sub_u32 %s, 0x%x, %s' % (sT0, lit, sSig))
                v = (vWq, T41)[j >> 1]
            else:
                a('s_mov_b32 %s, 0x%x' % (sT0, (16 * (j >> 1) + 4 * (j & 1)) * 1280 + tile[1] * 128 - 1024 * j))
                v = (vWo, T43)[j & 1]
            a('buffer_load_dwordx4 %s, %s, %s offen offset:%d lds' % (v, SRD[k], sT0, 1024 * j))
        q.add(i, 4)

    for i in range(7):
        issue(i)
    a('v_lshrrev_b32 %s, 4, v0' % t0)
    a('v_bfe_u32 %s, v0, 2, 2' % t1)
    a('v_lshl_add_u32 %s, %s, 3, %s' % (t2, t0, t1))
    a('v_and_b32 %s, 1, %s' % (t0, t0))
    a('v_lshl_add_u32 %s, %s, 2, %s' % (T(53), t0, t1))
    a('v_lshlrev_b32 %s, 1, %s' % (T(53), T(53)))
    a('v_bfe_u32 %s, v0, 1, 1' % T(54))
    a('v_and_b32 %s, 1, v0' % T(55))
    a('v_lshlrev_b32 %s, 3, %s' % (T(55), T(55)))
    a('s_lshl_b32 %s, %s, 2' % (sT0, sW))
    for t, dst in enumerate((vT, T45)):
        a('v_add3_u32 %s, %s, %d, %s' % (dst, T(54), 2 * t, sT0))
        a('v_xor_b32 %s, %s, %s' % (dst, dst, T(53)))
        a('v_lshl_add_u32 %s, %s, 4, %s' % (dst, dst, T(55)))
        a('v_lshl_add_u32 %s, %s, 8, %s' % (dst, t2, dst))
    a('v_lshrrev_b32 %s, 1, %s' % (t1, t1))
    a('v_lshl_add_u32 %s, %s, 1, %s' % (t1, t0, t1))
    a('v_xor_b32 %s, %s, %s' % (t1, sW, t1))
    a('v_lshl_add_u32 %s, %s, 1, %s' % (t1, t1, T(54)))
    a('v_lshl_add_u32 %s, %s, 4, %s' % (t1, t1, T(55)))
    a('v_lshl_add_u32 %s, %s, 7, %s' % (vTo, t2, t1))
    vTv, vTv1 = T(60), T(61)
    a('s_lshl_b32 %s, %s, 1' % (sT0, sW))
    for t, dst in enumerate((vTv, vTv1)):
        a('v_add3_u32 %s, %s, %d, %s' % (dst, T(54), 8 * t, sT0))
        a('v_xor_b32 %s, %s, %s' % (dst, dst, T(53)))
        a('v_lshl_add_u32 %s, %s, 4, %s' % (dst, dst, T(55)))
        a('v_lshl_add_u32 %s, %s, 8, %s' % (dst, t2, dst))
    FAR = {vT: T(56), T45: T(57), vTo: T(58), vTv: T(62), vTv1: T(63)}
    for near, far in FAR.items():
        a('v_add_u32 %s, 0x%x, %s' % (near, L_W, near))
        a('v_add_u32 %s, 0x10000, %s' % (far, near))
    a('v_lshlrev_b32 v1, 4, v0')
    a('v_add_u32 v2, %s, v1' % sM0N)
    a('v_add_u32 v3, 0x10000, v2')

    g, n = T(0), T(1)
    a('v_lshrrev_b32 %s, 4, v0' % g)
    a('v_and_b32 %s, 15, v0' % n)
    a('v_mov_b32 v4, 0x4444')
    a('v_mov_b32 %s, 0xeeee' % t0)
    a('v_and_b32 %s, 2, v0' % t1)
    a('v_cmp_ne_u32 vcc, 0, %s' % t1)
    a('v_cndmask_b32 v4, v4, %s, vcc' % t0)
    rh, gl, gh = T(2), T(3), T(4)
    rho(a, rh, t0)
    a('v_and_b32 %s, 1, %s' % (gl, g))
    a('v_lshrrev_b32 %s, 1, %s' % (gh, g))
    a('v_mul_u32_u24 v5, %d, %s' % (2 * RP, g))
    a('v_bfe_u32 %s, v0, 2, 1' % t0)
    a('v_lshl_add_u32 v5, %s, 4, v5' % t0)
    a('v_bfe_u32 %s, v0, 3, 1' % t0)
    a('v_lshl_add_u32 v5, %s, 3, v5' % t0)
    a('v_and_b32 %s, 3, v0' % t0)
    a('v_lshl_add_u32 v5, %s, 1, v5' % t0)
    a('s_lshl_b32 %s, %s, 6' % (sT0, sW))
    a('v_add_u32 v5, %s, v5' % sT0)
    a('v_mul_u32_u24 v6, %d, %s' % (RP, rh))
    a('v_lshl_add_u32 v6, %s, 4, v6' % g)
    a('s_lshl_b32 %s, %s, 8' % (sT0, sW))
    a('s_add_u32 %s, %s, 0x%x' % (sT0, sT0, L_OI))
    a('v_and_b32 %s, 13, v0' % t1)
    a('v_lshl_add_u32 %s, %s, 1, %s' % (t1, gh, t1))
    a('v_and_b32 %s, 2, v0' % t2)
    a('v_lshl_add_u32 %s, %s, 5, %s' % (t1, t2, t1))
    a('v_lshlrev_b32 %s, 4, %s' % (t1, t1))
    a('v_lshl_add_u32 v7, %s, 3, %s' % (gl, t1))
    a('v_add_u32 v7, %s, v7' % sT0)
    a('s_lshl_b32 %s, %s, 8' % (sT0, sIDX))
    a('s_lshl_b32 %s, %s, 13' % (sT1, sW))
    a('s_add_u32 %s, %s, %s' % (sT0, sT0, sT1))
    a('v_lshl_add_u32 v8, v0, 2, %s' % sT0)
    a('s_lshl_b32 %s, %s, 10' % (sT0, sW))
    a('v_add_u32 v11, %s, v1' % sT0)
    a('s_lshl_b32 %s, %s, 8' % (sT0, sW))
    a('s_add_u32 %s, %s, 4096' % (sT0, sT0))
    a('v_lshl_add_u32 v9, v0, 2, %s' % sT0)
    a('v_and_b32 %s, 8, v0' % t1)
    a('v_and_b32 %s, 1, v0' % t2)
    a('v_lshl_add_u32 %s, %s, 2, %s' % (t1, t2, t1))
    a('v_bfe_u32 %s, v0, 1, 2' % t2)
    a('v_add_u32 %s, %s, %s' % (t1, t1, t2))
    a('v_lshl_add_u32 %s, %s, 4, %s' % (t1, g, t1))
    a('v_lshlrev_b32 v10, 4, %s' % t1)
    a('s_mov_b32 %s, 0' % sS)
    a('s_lshl_b32 %s, %s, 19' % (sT1, sGRP))
    a('s_add_u32 %s, %s, 0x%x' % (sPubL, sT1, MEML + 8192))
    a('s_add_u32 %s, %s, 0x%x' % (sMemL, sT1, MEML))
    for t in range(5):
        a('s_add_u32 %s, %s, 0x%x' % (sP[t], sT1, PART + t * 32768))
    a('s_add_u32 %s, %s, 0x%x' % (sOwn0, sT1, PART))
    a('s_add_u32 %s, %s, 0x%x' % (sOwn1, sT1, PART + 4096))
    a('s_lshl_b32 %s, %s, 20' % (sT1, sGRP))
    a('s_add_u32 %s, %s, 0x%x' % (sPubR, sT1, MEMR + 16384))
    a('s_xor_b32 %s, %s, 0x100000' % (sT1, sT1))
    a('s_add_u32 %s, %s, 0x%x' % (sMemRin, sT1, MEMR))
    a('s_lshl_b32 %s, %s, 14' % (sKxN, sIDX))
    a('s_lshl_b32 %s, %s, 11' % (sT2, sW))
    a('s_add_u32 %s, %s, 8192' % (sT2, sT2))
    a('s_add_u32 %s, %s, %s' % (sVx, sKxN, sT2))
    a('s_add_u32 %s, %s, 0x%x' % (sVm0, sT2, L_KX))
    a('s_lshl_b32 %s, %s, 12' % (sT2, sW))
    a('s_add_u32 %s, %s, %s' % (sT2, sT2, sKxN))
    a('s_add_u32 %s, %s, 0x80000' % (sWarm, sT2))
    a('s_lshl_b32 %s, %s, 12' % (sKM, sIDX))
    a('s_lshl_b32 %s, %s, 11' % (sT1, sGRP))
    a('s_add_u32 %s, %s, %s' % (sKM, sKM, sT1))
    a('s_lshl_b32 %s, %s, 9' % (sT1, sW))
    a('s_add_u32 %s, %s, %s' % (sKM, sKM, sT1))
    a('s_add_u32 %s, %s, 0x%x' % (sKM, sKM, KMVM - 0x20000))
    a('s_and_b32 %s, %s, 7' % (sT1, sIDX))
    a('s_add_u32 %s, %s, 32' % (sT1, sT1))
    a('s_bitcmp1_b32 %s, 0' % sW)
    a('s_cselect_b32 %s, %s, %s' % (sT1, sT1, sIDX))
    a('s_lshl_b32 %s, %s, 7' % (sLine, sT1))
    a('s_lshl_b32 %s, %s, 5' % (sT1, sGRP))
    a('s_add_u32 %s, %s, %s' % (sT1, sT1, sIDX))
    a('s_lshl_b32 %s, %s, 7' % (sT1, sT1))
    a('s_add_u32 %s, %s, 0x%x' % (sFlag, sT1, FLG))
    import struct
    import math
    cbits = struct.unpack('<I', struct.pack('<f', 128 ** -0.5 * math.log2(math.e)))[0]
    a('s_mov_b32 %s, 0x%x' % (sC, cbits))
    a('s_mov_b32 s58, 0xcccccccc')
    a('s_mov_b32 s59, 0xcccccccc')
    a('s_mov_b32 %s, 0' % sRetry)
    a('s_lshl_b32 %s, %s, 4' % (sW16, sW))
    a('s_sub_u32 %s, 3, %s' % (sT1, sW))
    a('s_lshl_b32 %s, %s, 5' % (sT1, sT1))
    a('s_add_u32 %s, %s, %s' % (sT1, sT1, sIDX))
    a('s_cmp_lt_u32 %s, 40' % sT1)
    a('s_cselect_b32 %s, 1, 0' % sOwner)
    a('s_cselect_b32 %s, %s, 0' % (sT1, sT1))
    a('s_and_b32 %s, %s, 1' % (sT2, sT1))
    a('s_lshl_b32 %s, %s, 7' % (sT2, sT2))
    a('s_lshr_b32 %s, %s, 1' % (sT1, sT1))
    a('s_lshl_b32 %s, %s, 13' % (sT3, sT1))
    a('s_add_u32 %s, %s, %s' % (sT3, sT3, sT2))
    a('v_bfe_u32 %s, v0, 3, 1' % t1)
    a('v_lshl_add_u32 %s, %s, 2, %s' % (t1, t1, g))
    a('v_lshlrev_b32 %s, 8, %s' % (t1, t1))
    a('v_and_b32 %s, 7, v0' % t2)
    a('v_lshl_add_u32 v12, %s, 4, %s' % (t2, t1))
    a('v_add_u32 v12, %s, v12' % sT3)
    a('s_lshl_b32 %s, %s, 8' % (sT3, sT1))
    a('s_add_u32 %s, %s, %s' % (sT3, sT3, sT2))
    a('v_lshlrev_b32 %s, 3, %s' % (t2, t2))
    a('v_lshl_add_u32 v13, %s, 6, %s' % (gl, t2))
    a('v_add_u32 v13, %s, v13' % sT3)
    a('s_sub_u32 %s, %s, 8192' % (sKxN, sVx))

    def trread(i, f, b):
        tile = TILES[i]
        pos = (i % 8) * 16384
        for half in range(2):
            for j, row in enumerate((0, 4, 32, 36)):
                if tile[0] == 'O':
                    v, o = vTo, pos + (row + 64 * half) * 128
                else:
                    v, o = ((vTv, vTv1) if tile[0] == 'V' else (vT, T45))[half], pos + row * 256
                if o >= 65536:
                    v, o = FAR[v], o - 65536
                r = b + 8 * half + 2 * j
                a('ds_read_b64_tr_b16 %s[%d:%d], %s offset:%d' % (f, r, r + 1, v, o))

    NR = len(REG_TILES)
    for i in range(NR):
        q.wait(i)
        a('s_barrier')
        if i == 0:
            census(a)
        issue(i + 7)
        f, b = tile_reg(TILES[i])
        trread(i, f, b)
        a('s_waitcnt lgkmcnt(0)')
    srd(a, 12, 74, 10240)
    a('v_bfe_u32 %s, v0, 3, 1' % t0)
    a('v_and_b32 %s, 2, v0' % t1)
    a('v_lshl_add_u32 %s, %s, 2, %s' % (t0, t0, t1))
    a('v_bfe_u32 %s, v0, 2, 1' % t1)
    a('v_add_u32 %s, %s, %s' % (t0, t0, t1))
    a('v_mul_u32_u24 %s, 1280, %s' % (t0, t0))
    a('v_lshrrev_b32 %s, 4, v0' % t1)
    a('v_lshl_add_u32 %s, %s, 5, %s' % (t0, t1, t0))
    a('v_and_b32 %s, 1, v0' % t1)
    a('v_lshl_add_u32 %s, %s, 4, %s' % (t0, t1, t0))
    for j in range(3):
        skip = a.label('m0s')
        a('s_add_u32 %s, %s, %d' % (sT0, sW, 4 * j))
        if j == 2:
            a('s_and_b32 %s, %s, 9' % (sT0, sT0))
        a('s_lshl_b32 %s, %s, 10' % (sT1, sT0))
        a('s_add_u32 m0, %s, 0x%x' % (sT1, L_IMG))
        a('s_mul_i32 %s, %s, 5' % (sT1, sGRP))
        a('s_add_u32 %s, %s, %s' % (sT0, sT0, sT1))
        a('s_sub_u32 %s, %s, 10' % (sT1, sT0))
        a('s_cmp_ge_u32 %s, 10' % sT0)
        a('s_cselect_b32 %s, %s, %s' % (sT0, sT1, sT0))
        a('s_lshl_b32 %s, %s, 7' % (sT0, sT0))
        a('buffer_load_dwordx4 %s, s[12:15], %s offen lds' % (t0, sT0))
        q.add('mem0')
    for i in range(NR, len(TILES)):
        q.wait(i)
        a('s_barrier')
        if i == NR:
            issue(len(TILES) - 1)
        if i == len(TILES) - 1:
            again = a.label('start')
            a('s_mov_b32 %s, 0' % sSpin)
            if stamps:
                a('s_memrealtime s[98:99]')
            a('s_branch %s' % (again + 'g'))
            a(again + ':')
            a('v_lshlrev_b32 %s, 2, v0' % t0)
            a('buffer_load_dword %s, %s, %s, 0 offen sc1' % (t0, t0, DBG))
            spin_check(a)
            a('s_waitcnt vmcnt(0)')
            a(again + 'g:')
            a('s_mov_b32 %s, %s' % (sT3, sSpin))
            verdict(a, t0)
            a('s_mov_b32 %s, %s' % (sSpin, sT3))
            a('v_readlane_b32 %s, %s, %d' % (sT1, t0, D_CAL))
            a('s_cmp_eq_u32 %s, 0' % sT1)
            a('s_cbranch_scc1 %s' % again)
            if not opt.get('chain_only'):
                a('v_readlane_b32 %s, %s, %d' % (sT2, t0, D_KV))
                a('s_cmp_lg_u32 %s, 0x20202020' % sT2)
                a('s_cbranch_scc1 %s' % again)
            a('s_and_b32 %s, %s, 1' % (sT1, sT1))
            if 'forcecal' in opt:
                a('s_mov_b32 %s, %d' % (sT1, opt['forcecal'] & 1))
            if opt.get('flipcal'):
                a('s_xor_b32 %s, %s, 1' % (sT1, sT1))
            a('s_lshl_b32 %s, %s, 13' % (sT1, sT1))
            a('s_add_u32 %s, %s, %s' % (sPubR, sPubR, sT1))
            a('s_add_u32 %s, %s, %s' % (sMemRin, sMemRin, sT1))
            k_dma(a)
        trread(i, 'v', 16)
        a('s_waitcnt lgkmcnt(0)')
        a('s_barrier')
        for j in range(4):
            o = (i % 8) * 16384 + j * 1024
            a('ds_write_b128 %s, %s offset:%d' % ('v2' if o < 65536 else 'v3', T(4 * j, 4), o & 65535))
        if i == len(TILES) - 3:
            a('v_lshlrev_b32 %s, 2, v0' % t0)
            a('buffer_load_dword %s, %s, %s, 0 offen sc1' % (t0, t0, DBG))
            q.add(len(TILES) - 1)
    a('s_mov_b32 %s, 0x%x' % (sLim, struct.unpack('<I', struct.pack('<f', opt.get('lim', 30) / (128 ** -0.5 * math.log2(math.e))))[0]))
    a('s_mov_b32 %s, 0xf0000000' % sOOB)
    a('s_cmp_eq_u32 %s, 3' % sW)
    a('s_cselect_b32 %s, %s, %s' % (sFlag3, sFlag, sOOB))
    a('s_mov_b32 %s, %s' % (sFl3, sFlag3))
    a('s_mov_b32 s22, 0x3f803f80')
    a('s_mov_b32 s23, 0x3f803f80')
    if opt.get('acc'):
        for k in range(64, 86):
            a('s_mov_b32 s%d, 0' % k)
    if stamps:
        a('s_memtime s[92:93]')
        a('s_memrealtime s[100:101]')
    if opt.get('fine'):
        edge(a, 0)
        a('s_lshl_b32 %s, %s, 5' % (sT0, sGRP))
        a('s_add_u32 %s, %s, %s' % (sT0, sT0, sIDX))
        a('s_lshl_b32 %s, %s, 2' % (sT0, sT0))
        a('s_add_u32 %s, %s, %s' % (sT0, sT0, sW))
        a('s_lshl_b32 %s, %s, 12' % (sT0, sT0))
        a('s_add_u32 s26, %s, 0x%x' % (sT0, STAMP + 4096 + 64))
    fast, slow_ = a.label('loopfast'), a.label('loopsafe')
    a('s_waitcnt vmcnt(0)')
    a('s_cmp_lg_u32 %s, 0' % sSAFE)
    a('s_cbranch_scc1 %s' % slow_)
    fin = a.label('chainfin')
    step_loop(a, False, fast, fin, opt)
    step_loop(a, True, slow_, fin, opt)
    a(fin + ':')
    if opt.get('fine'):
        edge(a, 1)
    a('s_waitcnt lgkmcnt(0)')
    a('s_barrier')
    stage(a)
    a('s_add_u32 %s, %s, 0x20000' % (sKM, sKM))
    a('v_lshrrev_b32 %s, 1, v1' % T(62))
    a('s_waitcnt lgkmcnt(0)')
    a('buffer_store_dwordx2 v[14:15], %s, %s, %s offen sc1' % (T(62), WS, sKM))
    if opt.get('cnt'):
        a('s_lshl_b32 %s, %s, 5' % (sT0, sGRP))
        a('s_add_u32 %s, %s, %s' % (sT0, sT0, sIDX))
        a('s_lshl_b32 %s, %s, 2' % (sT0, sT0))
        a('s_add_u32 %s, %s, %s' % (sT0, sT0, sW))
        a('s_lshl_b32 %s, %s, 2' % (sT0, sT0))
        a('s_add_u32 %s, %s, 0x%x' % (sT0, sT0, STAMP + 2048))
        a('v_mov_b32 v16, %s' % sRetry)
        a('buffer_store_dword v16, off, %s, %s' % (WS, sT0))
        if opt.get('acc'):
            for k in range(4):
                a('v_mov_b32 v%d, s%d' % (20 + k, (20 + k * 1) if (opt.get('ackd') and k < 2) else 82 + k))
            a('s_lshl_b32 %s, %s, 2' % (sT0, sT0))
            a('s_sub_u32 %s, %s, 0x%x' % (sT0, sT0, 4 * (STAMP + 2048) - STAMP - 0x180000))
            a('buffer_store_dwordx4 v[20:23], off, %s, %s' % (WS, sT0))
    a('s_waitcnt vmcnt(0)')
    a('s_barrier')
    a('s_cmp_lg_u32 %s, 0' % sW)
    a('s_cbranch_scc1 L_end')
    a('v_mov_b32 v14, 64')
    a('buffer_store_dword v14, off, %s, %s sc1' % (WS, sFlag))
    if stamps:
        a('s_memtime s[94:95]')
        a('s_memrealtime s[86:87]')
        a('s_waitcnt lgkmcnt(0)')
        a('s_sub_u32 s94, s94, s92')
        a('s_sub_u32 s86, s86, s100')
        a('v_mov_b32 v16, s94')
        a('v_mov_b32 v17, s86')
        a('v_mov_b32 v18, s100')
        a('v_mov_b32 v19, s98')
        a('s_lshl_b32 %s, %s, 5' % (sT0, sGRP))
        a('s_add_u32 %s, %s, %s' % (sT0, sT0, sIDX))
        a('s_lshl_b32 %s, %s, 4' % (sT0, sT0))
        a('s_add_u32 %s, %s, 0x%x' % (sT0, sT0, STAMP))
        a('v_mov_b32 v20, s24')
        a('buffer_store_dwordx4 v[16:19], off, %s, %s' % (WS, sT0))
        a('buffer_store_dword v20, off, %s, %s offset:1024' % (WS, sT0))
    a('s_branch L_end')


PHASE = {'p4': 4}
AREG = [40, 44, 48, 40, 44, 48, 52, 56, 40, 44]


def edge(a, k):
    lp = a.label('edge')
    a('s_memrealtime s[64:65]')
    a('s_waitcnt lgkmcnt(0)')
    a(lp + ':')
    a('s_memrealtime s[66:67]')
    a('s_memtime s[68:69]')
    a('s_waitcnt lgkmcnt(0)')
    a('s_cmp_eq_u32 s64, s66')
    a('s_cbranch_scc1 %s' % lp)
    a('s_lshl_b32 %s, %s, 5' % (sT0, sGRP))
    a('s_add_u32 %s, %s, %s' % (sT0, sT0, sIDX))
    a('s_lshl_b32 %s, %s, 2' % (sT0, sT0))
    a('s_add_u32 %s, %s, %s' % (sT0, sT0, sW))
    a('s_lshl_b32 %s, %s, 4' % (sT0, sT0))
    a('s_add_u32 %s, %s, 0x%x' % (sT0, sT0, STAMP + 0x1c0000 + 8 * k))
    a('v_mov_b32 %s, s66' % T(62))
    a('v_mov_b32 %s, s68' % T(63))
    a('buffer_store_dwordx2 %s, off, %s, %s' % (T(62, 2), WS, sT0))


def k_dma(a):
    a('s_sub_u32 m0, %s, 8192' % sVm0)
    a('s_nop 0')
    for j in range(2):
        a('buffer_load_dwordx4 v1, %s, %s offen offset:%d sc1 lds' % (WS, sKxN, 1024 * j))
    a('s_add_u32 %s, %s, 0x80000' % (sKxN, sKxN))


def stage(a, flush=False):
    skip = a.label('stage')
    a('s_cmp_lg_u32 %s, 0' % sGRP)
    a('s_cbranch_scc1 %s' % skip)
    a('s_lshl_b32 %s, %s, 6' % (sT0, sW))
    a('v_bfe_u32 v14, v0, 1, 3')
    a('v_mul_u32_u24 v14, %d, v14' % RP)
    a('v_lshrrev_b32 v15, 4, v0')
    a('v_lshl_add_u32 v14, v15, 4, v14')
    a('v_and_b32 v15, 1, v0')
    a('v_lshl_add_u32 v14, v15, 3, v14')
    a('v_add_u32 v14, %s, v14' % sT0)
    a('ds_read_b64 v[14:15], v14 offset:%d' % L_KT)
    a(skip + ':')
    if flush:
        nf = a.label('flush')
        a('s_cmp_lt_u32 %s, 62' % sS)
        a('s_cbranch_scc1 %s' % nf)
        a('v_lshrrev_b32 %s, 1, v1' % T(63))
        a('s_waitcnt lgkmcnt(0)')
        a('buffer_store_dwordx2 v[14:15], %s, %s, %s offen sc1' % (T(63), WS, sKM))
        a(nf + ':')


def backoff(a, cycles):
    n = cycles // 4
    while n > 0:
        a('s_nop %d' % (min(n, 16) - 1))
        n -= 16


def g_loads(a, r, soff):
    a('buffer_load_dwordx4 %s, v11, %s, %s offen sc1' % (T(r[0], 4), WS, soff))
    a('buffer_load_dword %s, v9, %s, %s offen sc1' % (T(r[1]), WS, soff))


def g_writes(r, o=0):
    return ['ds_write_b128 v11, %s offset:%d' % (T(r[0], 4), o), 'ds_write_b32 v9, %s offset:%d' % (T(r[1]), o)]


def g_check(r):
    return ['v_max3_u32 %s, %s, %s, %s' % (T(63), T(r[0]), T(r[0] + 1), T(r[0] + 2)),
            'v_max3_u32 %s, %s, %s, %s' % (T(63), T(63), T(r[0] + 3), T(r[1])),
            'v_cmp_eq_u32 vcc, -1, %s' % T(63)]


def pack_ops(r, twice=False):
    ops = ['v_add_f32 %s, %s, %s' % (T(r + 2), T(r), T(r + 2)),
           'v_add_f32 %s, %s, %s' % (T(r + 3), T(r + 1), T(r + 3)),
           'v_cvt_pk_bf16_f32 %s, %s, %s' % (T(r), T(r + 2), T(r + 3))]
    if twice:
        ops.append('v_cvt_pk_bf16_f32 %s, %s, %s' % (T(r + 1), T(r + 2), T(r + 3)))
    return ops


def step_loop(a, safe, head, fin, opt):
    loc = ' sc1' if safe else ''
    st = opt.get('phase_stamps')
    sm = lambda acc, A, B: 'v_smfmac_f32_16x16x64_bf16 %s, %s, %s, v4' % (T(acc, 4), T(A, 4), B)
    mf = lambda D, A, B, C: 'v_mfma_f32_16x16x32_bf16 %s, %s, %s, %s' % (T(D, 4), T(A, 4), T(B, 4), C)
    B0, B1 = T(24, 8), T(32, 8)
    lq = []
    rare = []
    vA = 'v10'

    def stamp(i):
        if opt.get('fine') and i not in (2, 4, 5, 11):
            a('s_memtime s[%d:%d]' % ((86, 87) if i == 1 else (64 + 2 * i, 65 + 2 * i)))
            if i == 3:
                a('s_mov_b32 s66, s86')
        if opt.get('acc') and i in (1, 3, 11, 6, 7):
            if i == 1:
                for k, (x, y) in enumerate(((3, 1), (5, 3), (6, 5), (7, 6))):
                    a('s_sub_u32 %s, s%d, s%d' % (sT0, 64 + 2 * x, 64 + 2 * y))
                    a('s_add_u32 s%d, s%d, %s' % (82 + k, 82 + k, sT0))
            j = 5 if i == 11 else i
            a('s_memtime s[%d:%d]' % (64 + 2 * j, 65 + 2 * j))
        if st and i != 11:
            a('%s s[%d:%d]' % ('s_memrealtime' if opt.get('rt') else 's_memtime', 64 + 2 * i, 65 + 2 * i))

    def count(inc):
        if st or opt.get('cnt') or opt.get('fine'):
            a('s_add_u32 %s, %s, 0x%x' % (sRetry, sRetry, inc))

    def ds(text, tag):
        a(text)
        lq.append(tag)

    def lwait(tag):
        if tag not in lq:
            return
        last = max(i for i, t in enumerate(lq) if t == tag)
        a('s_waitcnt lgkmcnt(%d)' % min(len(lq) - 1 - last, 15))
        del lq[:last + 1]

    def ldslot(dst, tile, half, tag='x'):
        o = lds_off(tile, half)
        ds('ds_read_b128 %s, %s offset:%d' % (T(dst, 4), 'v3' if o >> 16 else 'v2', o & 65535), tag)
        ds('ds_read_b128 %s, %s offset:%d' % (T(dst + 4, 4), 'v3' if o >> 16 else 'v2', (o & 65535) + 1024), tag)

    def img(dst, c):
        ds('ds_read_b128 %s, %s offset:%d' % (T(dst, 4), vA, L_IMG - UB + c * 1024), 'A%d' % c)

    def opread(dst, base, ks, tag):
        ds('ds_read_b128 %s, v6 offset:%d' % (T(dst, 4), base + ks * 64), tag)

    def zero(lo, hi):
        for r in range(lo, hi, 2):
            a('v_mov_b64 %s, 0' % T(r, 2))

    def phase(name, back=8):
        if name in opt or name in PHASE:
            a('; phase %d %d' % (opt.get(name, PHASE.get(name)), back))

    def barrier(name=None):
        if name:
            phase(name)
        a('s_waitcnt lgkmcnt(0)')
        a('s_barrier')
        del lq[:]

    SA, SB, SR = (56, 61), (52, 62), (52, 60)

    def prep():
        zero(0, 24)
        a('s_and_b32 %s, %s, 15' % (sT0, sS))
        a('s_or_b32 %s, %s, %s' % (sT0, sT0, sW16))
        a('s_add_u32 %s, %s, %d' % (sChk, sS, 4 + 16 * D_KV))
        a('s_lshr_b32 %s, %s, 2' % (sChk, sChk))
        a('s_cmp_eq_u32 %s, 12' % sT0)
        a('s_cselect_b32 %s, %s, 0' % (sChk, sChk))
        a('s_cmp_lt_u32 %s, 48' % sS)
        a('s_cselect_b32 %s, %s, 0' % (sChk, sChk))
    b1 = a.label('b1')
    a(head + ':')
    prep()
    ldslot(24, ('V', 0), 0)
    ldslot(32, ('V', 0), 1)
    a('s_barrier')
    a('ds_read_b128 %s, v11 offset:5120' % T(SR[0], 4))
    a('ds_read_b32 %s, v9 offset:5120' % T(SR[1]))
    a('s_branch %s' % b1)
    a('.p2align 8')
    a('; hot-begin')
    for _ in range(opt.get('pad', 0)):
        a('s_nop 0')
    top = head + '_top'
    a(top + ':')
    stamp(0)
    backoff(a, opt.get('gdelay', 200))
    if opt.get('fine'):
        stamp(9)
    again, got = a.label('gag'), a.label('got')
    g_loads(a, SA, sMemL)
    backoff(a, opt.get('gspace', 60))
    g_loads(a, SB, sMemL)
    a('s_waitcnt vmcnt(11)')
    ldslot(24, ('V', 0), 0)
    ldslot(32, ('V', 0), 1)
    stage(a, True)
    a('s_mov_b32 %s, 0' % sSpin)
    if opt.get('fine'):
        a('s_memtime s[68:69]')
        a('s_waitcnt vmcnt(2)')
        a('s_memtime s[72:73]')
    a(again + ':')
    a('s_waitcnt vmcnt(2)')
    for x in g_writes(SA) + g_check(SA):
        a(x)
    a('s_cbranch_vccnz %s' % (again + 'b'))
    a(got + ':')

    def second(again=again, got=got):
        a(again + 'b:')
        g_loads(a, SA, sMemL)
        count(1)
        a('s_waitcnt vmcnt(2)')
        for x in g_writes(SB) + g_check(SB):
            a(x)
        a('s_cbranch_vccz %s' % got)
        g_loads(a, SB, sMemL)
        count(1)
        spin_check(a)
        a('s_branch %s' % again)
    rare.append(second)
    backoff(a, opt.get('rdelay', 0))
    g_loads(a, SR, sMemRin)
    a(b1 + ':')
    barrier('p1')
    stamp(1)
    img(40, 0)
    img(44, 1)
    img(48, 2)
    RI = opt.get('rissue', -1)
    a('s_mov_b32 m0, %s' % sVm0)
    a('s_nop 0')
    for j in range(2):
        a('buffer_load_dwordx4 v1, %s, %s offen offset:%d sc1 lds' % (WS, sVx, 1024 * j))
    nl = a.label('nlast')
    a('s_cmp_ge_u32 %s, 62' % sS)
    a('s_cbranch_scc1 %s' % nl)
    a(nl + 'b:')

    def early_flag():
        a(nl + ':')
        a('v_mov_b32 %s, %s' % (T(63), sS))
        a('buffer_store_dword %s, off, %s, %s sc1' % (T(63), WS, sFlag3))
        a('s_mov_b32 %s, %s' % (sFl3, sOOB))
        a('s_branch %s' % (nl + 'b'))
    rare.append(early_flag)
    if opt.get('fine'):
        for i in range(11):
            a('v_writelane_b32 %s, s%d, %d' % (T(62), 64 + 2 * i, i))
        a('v_writelane_b32 %s, %s, 12' % (T(62), sRetry))
        a('v_lshrrev_b32 %s, 2, v1' % T(63))
        a('s_mov_b64 exec, 0x1fff')
        a('buffer_store_dword %s, %s, %s, s26 offen' % (T(62), T(63), WS))
        a('s_mov_b64 exec, -1')
        a('s_add_u32 s26, s26, 64')
    slow_ops = ['buffer_store_dwordx2 v[14:15], %s, %s, %s offen sc1' % (T(61), WS, sKM),
                'v_lshlrev_b32 %s, 3, v1' % T(63), 's_mov_b32 m0, 0x%x' % (L_KT + 3072), 's_mov_b32 exec_hi, 0',
                'buffer_load_dword %s, %s, %s offen sc1 lds' % (T(63), WS, sWarm), 's_mov_b32 exec_hi, -1']
    Areg = AREG
    RP_ = opt.get('rpos', 22)
    lops = []
    for c in range(5):
        nxt = ('V', c + 1) if c < 4 else ('Q', 9)
        lops += [(c, 16, B0, nxt, 0), (c, 0, slot(('Q', c), 0), None, 0), (c, 4, slot(('Q', c), 1), None, 0),
                (c, 20, B1, nxt, 1), (c, 8, slot(('K', c), 0), None, 0), (c, 12, slot(('K', c), 1), None, 0)]
    wr, ck = g_writes(SR, 5120), g_check(SR)
    norem, rok, ragain, late, watch = (a.label(x) for x in ('norem', 'rok', 'rag', 'late', 'watch'))

    def local_op(i, plain=False):
        c, acc, B, nxt, half = lops[i]
        if plain:
            a('s_waitcnt lgkmcnt(0)')
        else:
            lwait('A%d' % c)
            if nxt:
                lwait('B%d' % half)
        a(sm(acc, Areg[c], B))
        if nxt:
            ldslot(24 + 8 * half, nxt, half, 'B%d' % half)
        if i % 6 == 5 and c < 2:
            img(Areg[c + 3], c + 3)
    BP = opt.get('bpos', 29)
    assert RP_ <= BP - 2
    for i in range(30):
        local_op(i)
        if i == RP_:
            a('s_waitcnt vmcnt(%d)' % (3 if opt.get('fine') else 2))
            a(ck[0])
            a(ck[1])
        if i == RP_ + 1:
            a(ck[2])
        if i == RP_ + 2:
            a('s_cbranch_vccnz %s' % late)
            for x in wr:
                ds(x, 'w')
        if i == BP:
            a(rok + ':')
            a('v_lshrrev_b32 %s, 1, v1' % T(61))
            stamp(2)
            barrier('p2')
            stamp(3)
            for cc in range(5, 10 if BP == 29 else 9):
                img(Areg[cc], cc)
        elif i == 29:
            img(Areg[9], 9)

    def tail_paths():
        keep = list(lq)
        a(late + ':')
        for i in range(RP_ + 3, BP + 1):
            local_op(i, True)
        count(0x10000)
        a('s_mov_b32 %s, 0' % sSpin)
        a('s_add_u32 %s, %s, %s' % (sT0, sMemRin, sLine))
        a('s_branch %s' % ragain)
        a(watch + ':')
        a('buffer_load_dword %s, off, %s, %s sc1' % (T(63), WS, sT0))
        spin_check(a)
        a('s_waitcnt vmcnt(0)')
        a('v_cmp_eq_u32 vcc, -1, %s' % T(63))
        a('s_cbranch_vccnz %s' % watch)
        count(0x1000000)
        backoff(a, opt.get('rspace', 60))
        a(ragain + ':')
        g_loads(a, SR, sMemRin)
        spin_check(a)
        a('s_waitcnt vmcnt(0)')
        for x in ck:
            a(x)
        a('s_cbranch_vccnz %s' % watch)
        for x in wr:
            a(x)
        a('s_branch %s' % rok)
        lq[:] = keep
    kxo = lambda kt, ks: L_KX - UB + kt * 4096 + ks * 1024
    order = [(0, 0), (1, 0), (0, 1), (1, 1), (0, 2), (1, 2), (0, 3), (1, 3)]
    xreg = [60, 0, 4, Areg[5], Areg[6], Areg[7], Areg[8], Areg[9]]

    def xread(i):
        ds('ds_read_b128 %s, v1 offset:%d' % (T(xreg[i], 4), kxo(*order[i])), 'X%d' % i)
    seq = [('Q', 0, c) for c in range(5, 9)] + [('Q', 1, 5), ('Q', 1, 6), ('Q', 0, 9), ('Q', 1, 7), ('Q', 1, 8), ('Q', 1, 9)] + \
          [('K', t, c) for t in range(2) for c in range(5, 10)] + \
          [('V', t, c) for c in range(5, 10) for t in range(2)]
    acc = {'Q': 0, 'K': 8, 'V': 16}
    gap = {i: [] for i in range(30)}
    w16 = lambda r, off: [('wq' if r < 8 else 'wk', 'ds_write_b16 v5, %s offset:%d' % (T(r), off)),
                          ('wq' if r < 8 else 'wk', 'ds_write_b16_d16_hi v5, %s offset:%d' % (T(r), off + RP))]
    for j, (r, off) in enumerate(((0, L_QT), (4, L_QT + 32), (8, L_KT))):
        ops = pack_ops(r)
        g0 = (8, 12, 16)[j]
        for k in range(3):
            gap[g0 + k].append(ops[k])
        gap[g0 + 3] = w16(r, off) + gap[g0 + 3]
    gap[21] += pack_ops(12)
    gap[22] = w16(12, L_KT + 32) + gap[22]
    for x in [slow_ops[0], slow_ops[2], 's_sub_u32 %s, %s, 1' % (sT0, sS), 's_max_i32 %s, %s, 0' % (sT0, sT0), slow_ops[1]]:
        a(x)
    gap[0] += slow_ops[3:]
    for i, (m, t, c) in enumerate(seq):
        lwait('A%d' % c)
        if m == 'Q' and c == 9:
            lwait('B%d' % t)
        a(sm(acc[m] + 4 * t, Areg[c], (B0, B1)[t] if (m, c) == ('Q', 9) else slot((m, c), t)))
        if i in (5, 13, 17):
            xread((5, 13, 17).index(i))
        for x in gap[i]:
            if isinstance(x, tuple):
                ds(x[1], x[0])
            else:
                a(x)
        if i == 19:
            stamp(4)
        B4 = opt.get('b4', 24)
        if i == 23:
            xread(3)
            xread(4)
        if i == B4:
            phase('p4', 16 if opt.get('acc') else 8)
            a('s_waitcnt vmcnt(2) lgkmcnt(2)')
            a('s_barrier')
            stamp(11)
            lq[:] = ['X3', 'X4']
            opread(24, L_QT, 0, 'q0')
        if i == 25:
            opread(28, L_QT, 1, 'q1')
            xread(5)
        if i == 26:
            opread(32, L_QT, 2, 'q2')
        if i == 27:
            xread(6)
            opread(36, L_QT, 3, 'q3')
        if i == 26:
            a('v_mov_b32 v14, %s' % sT0)
        if i == 28:
            a('buffer_store_dword v14, off, %s, %s sc1' % (WS, sFl3))
        if i == 27:
            ns = a.label('ns')
            a('s_cmp_lg_u32 %s, 0' % sChk)
            a('s_cbranch_scc1 %s' % ns)
            a(ns + 'b:')

            def sample(ns=ns):
                a(ns + ':')
                a('s_movk_i32 m0, 0x%x' % (L_KT + 3584))
                a('s_nop 0')
                a('buffer_load_dword off, %s, %s sc1 lds' % (DBG, sChk))
                a('s_branch %s' % (ns + 'b'))
            rare.append(sample)
        if i == 29:
            xread(7)
    kmreg = [0, 4, Areg[5], Areg[6]]
    vp = ['v_add_f32 %s, %s, %s' % (T(18), T(16), T(18)), 'v_add_f32 %s, %s, %s' % (T(19), T(17), T(19)),
          'v_add_f32 %s, %s, %s' % (T(22), T(20), T(22)), 'v_add_f32 %s, %s, %s' % (T(23), T(21), T(23))]
    for i, (kt, ks) in enumerate(order):
        lwait('q%d' % ks)
        lwait('X%d' % i)
        D = 8 + 4 * kt
        a(mf(D, xreg[i], 24 + 4 * ks, '0' if ks == 0 else T(D, 4)))
        if 1 <= i <= 4:
            opread(kmreg[i - 1], L_KT, i - 1, 'M%d' % (i - 1))
            a(vp[i - 1])
        if i == 5:
            ds('ds_read_b128 %s, v11 offset:%d' % (T(Areg[7], 4), L_KX + 8192), 'vx')
        if i == 6:
            ds('ds_read_b128 %s, v11 offset:%d' % (T(Areg[8], 4), L_KX + 8192 + 4096), 'vx')
            a('v_cvt_pk_bf16_f32 v15, %s, %s' % (T(22), T(23)))
        if i == 7:
            a('v_cvt_pk_bf16_f32 v14, %s, %s' % (T(18), T(19)))
    VX0, VX1 = Areg[7], Areg[8]
    fill = ['v_mov_b64 %s, %s' % (T(20, 2), sOnes),
            'v_max3_f32 %s, |%s|, |%s|, |%s|' % (T(16), T(8), T(9), T(10)),
            'v_max3_f32 %s, %s, |%s|, |%s|' % (T(16), T(16), T(11), T(12)),
            'v_max3_f32 %s, %s, |%s|, |%s|' % (T(16), T(16), T(13), T(14)),
            'v_mov_b64 %s, %s' % (T(22, 2), sOnes), 'v_mov_b32 %s, 0' % T(6)]
    for ks in range(4):
        lwait('M%d' % ks)
        a(mf(60, kmreg[ks], 24 + 4 * ks, '0' if ks == 0 else T(60, 4)))
        if ks < 3:
            a(fill[2 * ks])
            a(fill[2 * ks + 1])
    ldslot(24, ('O', 3), 0, 'bo')
    ldslot(32, ('O', 3), 1, 'bo')
    a('s_cmp_eq_u32 %s, 63' % sS)
    a('s_cbranch_scc1 %s' % fin)
    stamp(5)
    big = a.label('big')
    a('v_max_f32 %s, %s, |%s|' % (T(16), T(16), T(15)))
    a('v_mov_b32 %s, 0' % T(5))
    a('v_max3_f32 %s, %s, |%s|, |%s|' % (T(16), T(16), T(60), T(61)))
    a('v_cmp_nge_f32 vcc, %s, %s' % (sLim, T(16)))
    for r in range(8):
        a('v_mul_f32 %s, %s, %s' % (T(8 + r), sC, T(8 + r)))
    a('v_mul_f32 %s, %s, %s' % (T(60), sC, T(60)))
    a('v_mul_f32 %s, %s, %s' % (T(61), sC, T(61)))
    a('s_cbranch_vccnz %s' % big)
    a(big + 'b:')

    def shift():
        a(big + ':')
        a('v_max3_f32 %s, %s, %s, %s' % (T(16), T(8), T(9), T(10)))
        for x, y in ((11, 12), (13, 14), (15, 60)):
            a('v_max3_f32 %s, %s, %s, %s' % (T(16), T(16), T(x), T(y)))
        a('v_max_f32 %s, %s, %s' % (T(16), T(16), T(61)))
        for op in ('v_permlane32_swap_b32', 'v_permlane16_swap_b32'):
            a('v_mov_b32 %s, %s' % (T(17), T(16)))
            a('%s %s, %s' % (op, T(16), T(17)))
            a('v_max_f32 %s, %s, %s' % (T(16), T(16), T(17)))
        for r in list(range(8, 16)) + [60, 61]:
            a('v_sub_f32 %s, %s, %s' % (T(r), T(r), T(16)))
        a('s_branch %s' % (big + 'b'))
    rare.append(shift)
    for r in range(8):
        a('v_exp_f32 %s, %s' % (T(8 + r), T(8 + r)))
    a('v_exp_f32 %s, %s' % (T(60), T(60)))
    for r in range(4):
        a('v_cvt_pk_bf16_f32 %s, %s, %s' % (T(r), T(8 + 2 * r), T(9 + 2 * r)))
    a('v_exp_f32 %s, %s' % (T(61), T(61)))
    a('v_mov_b64 %s, 0' % T(44, 2))
    a(mf(8, 20, 0, '0'))
    a('v_cvt_pk_bf16_f32 %s, %s, %s' % (T(4), T(60), T(61)))
    lwait('vx')
    a(mf(12, VX0, 0, '0'))
    a('v_cvt_pk_bf16_f32 %s, %s, %s' % (T(7), T(60), T(61)))
    a('v_mov_b64 %s, 0' % T(46, 2))
    a(mf(16, VX1, 0, '0'))
    zero(48, 52)
    m16 = lambda D, A, B: 'v_mfma_f32_16x16x16_bf16 %s, %s, %s, %s' % (T(D, 4), A, T(B, 2), T(D, 4))
    a(m16(8, T(20, 2), 4))
    zero(52, 56)
    a(m16(12, 'v[14:15]', 4))
    zero(56, 60)
    a(m16(16, 'v[14:15]', 6))
    zero(40, 44)
    a('v_rcp_f32 %s, %s' % (T(8), T(8)))
    phase('p7', 0)
    a('s_mov_b64 exec, %s' % sN8)
    a('v_mov_b64 %s, %s' % (T(12, 2), T(16, 2)))
    a('v_mov_b64 %s, %s' % (T(14, 2), T(18, 2)))
    a('s_mov_b64 exec, -1')
    for r in (12, 14):
        a('v_pk_mul_f32 %s, %s, %s op_sel_hi:[1,0]' % (T(r, 2), T(r, 2), T(8, 2)))
    a('v_cvt_pk_bf16_f32 %s, %s, %s' % (T(12), T(12), T(13)))
    a('v_cvt_pk_bf16_f32 %s, %s, %s' % (T(13), T(14), T(15)))
    a('ds_write_b64 v7, %s' % T(12, 2))
    a('s_add_u32 %s, %s, 1' % (sS, sS))
    for s_, d in ((sMemRin, 16384), (sKM, 0x20000), (sVx, 0x80000), (sWarm, 0x80000)):
        a('s_add_u32 %s, %s, 0x%x' % (s_, s_, d))
    a('s_xor_b32 %s, %s, 8192' % (sMemL, sMemL))
    barrier('p5')
    stamp(6)
    ds('ds_read_b128 %s, v1 offset:%d' % (T(16, 4), L_OI), 'o0')
    ds('ds_read_b128 %s, v1 offset:%d' % (T(20, 4), L_OI + 1024), 'o1')
    wo = [(slot(('O', t), 0), slot(('O', t), 1)) for t in range(3)] + [(B0, B1), (T(0, 8), T(8, 8))]
    store = lambda t: 'buffer_store_dword %s, v8, %s, %s offen%s' % (T(40 + 4 * t), WS, sP[t], loc)
    gaps = {i: [] for i in range(10)}
    for t in range(3):
        ops = pack_ops(40 + 4 * t)
        gaps[2 * t + 3] += ops[:2]
        gaps[2 * t + 4] += ops[2:]
        gaps[2 * t + 5].insert(0, store(t))
    a('s_sub_u32 m0, %s, 8192' % sVm0)
    for i in range(10):
        t, kc = i // 2, i & 1
        if i < 2:
            lwait('o%d' % i)
        if i >= 8:
            lwait('w%d' % kc)
        a(sm(40 + 4 * t, 16 + 4 * kc, wo[t][kc]))
        if i < 2:
            ldslot(8 * i, ('O', 4), i, 'w%d' % i)
        if i in (2, 3):
            a('buffer_load_dwordx4 v1, %s, %s offen offset:%d sc1 lds' % (WS, sKxN, 1024 * (i - 2)))
        for x in gaps[i]:
            a(x)
    a('s_add_u32 %s, %s, 0x80000' % (sKxN, sKxN))
    for x in pack_ops(52) + pack_ops(56):
        a(x)
    a(store(3))
    a(store(4))
    stamp(7)
    for t in range(5):
        a('s_xor_b32 %s, %s, 0x40000' % (sP[t], sP[t]))
    noown, again, okA, join = a.label('noown'), a.label('oag'), a.label('ook'), a.label('ojoin')
    a('s_cmp_eq_u32 %s, 0' % sOwner)
    a('s_cbranch_scc1 %s' % noown)
    SETS = (44, 24)
    SEL, ACC, CK = 40, 60, 23

    def loads(r):
        for t in range(4):
            a('buffer_load_dwordx4 %s, v12, %s, %s offen offset:%d sc1' % (
                T(r + 4 * t, 4), WS, sOwn0 if t < 2 else sOwn1, 2048 * (t & 1)))

    def reduce_(r, young):
        for t in range(4):
            a('s_waitcnt vmcnt(%d)' % (young + 3 - t))
            a(mf(ACC, SEL, r + 4 * t, '0' if t == 0 else T(ACC, 4)))
            x = r + 4 * t
            if t == 0:
                a('v_max3_u32 %s, %s, %s, %s' % (T(CK), T(x), T(x + 1), T(x + 2)))
                a('v_max_u32 %s, %s, %s' % (T(CK), T(CK), T(x + 3)))
            else:
                a('v_max3_u32 %s, %s, %s, %s' % (T(CK), T(CK), T(x), T(x + 1)))
                a('v_max3_u32 %s, %s, %s, %s' % (T(CK), T(CK), T(x + 2), T(x + 3)))
        a('v_cmp_eq_u32 vcc, -1, %s' % T(CK))
    a('v_and_b32 %s, 3, v0' % T(60))
    a('v_bfe_u32 %s, v0, 2, 1' % T(61))
    a('v_lshlrev_b32 %s, 4, %s' % (T(61), T(61)))
    a('v_mov_b32 %s, 0x3f80' % T(62))
    a('v_lshlrev_b32 %s, %s, %s' % (T(61), T(61), T(62)))
    for p in range(4):
        a('v_cmp_eq_u32 vcc, %d, %s' % (p, T(60)))
        a('v_cndmask_b32 %s, 0, %s, vcc' % (T(SEL + p), T(61)))
    a('s_mov_b32 %s, 0' % sSpin)
    backoff(a, opt.get('odelay', 20))
    loads(SETS[0])
    prep()
    backoff(a, max(0, opt.get('ospace', 80) - 80))
    loads(SETS[1])
    def finish_sum():
        a('v_mov_b32 %s, 0' % T(CK))
        for r in range(4):
            a('v_add_f32_dpp %s, %s, %s row_ror:8 row_mask:0xf bank_mask:0xf' % (T(ACC + r), T(ACC + r), T(ACC + r)))
        a('v_cvt_pk_bf16_f32 %s, %s, %s' % (T(ACC), T(ACC), T(ACC + 1)))
        a('v_cvt_pk_bf16_f32 %s, %s, %s' % (T(ACC + 1), T(ACC + 2), T(ACC + 3)))
    a(again + ':')
    reduce_(SETS[0], 4)
    finish_sum()
    a('s_cbranch_vccnz %s' % (again + 'b'))
    a(okA + ':')

    def more(again=again, okA=okA):
        a(again + 'b:')
        loads(SETS[0])
        count(0x100)
        reduce_(SETS[1], 4)
        finish_sum()
        a('s_cbranch_vccz %s' % okA)
        loads(SETS[1])
        count(0x100)
        spin_check(a)
        a('s_branch %s' % again)
    rare.append(more)
    stamp(10)
    a('s_mov_b64 exec, 0x00ff00ff')
    a('buffer_store_dwordx2 %s, v13, %s, %s offen%s' % (T(ACC, 2), WS, sPubL, loc))
    a('s_barrier')
    a('buffer_store_dwordx2 %s, v13, %s, %s offen sc1' % (T(ACC, 2), WS, sPubR))
    a('s_mov_b64 exec, -1')
    a('v_mov_b64 %s, -1' % T(40, 2))
    a('v_mov_b64 %s, -1' % T(42, 2))
    a('s_xor_b32 %s, %s, 8192' % (sPubL, sPubL))
    a('s_mov_b64 exec, 0x00ff00ff')
    a('buffer_store_dwordx2 %s, v13, %s, %s offen%s' % (T(40, 2), WS, sPubL, loc))
    a('s_mov_b64 exec, -1')
    stamp(8)
    for t in range(4):
        a('buffer_store_dwordx4 %s, v12, %s, %s offen offset:%d%s' % (
            T(40, 4), WS, sOwn0 if t < 2 else sOwn1, 2048 * (t & 1), loc))
    a('s_xor_b32 %s, %s, 0x40000' % (sOwn0, sOwn0))
    a('s_xor_b32 %s, %s, 0x40000' % (sOwn1, sOwn1))
    if opt.get('ackd'):
        a('s_waitcnt vmcnt(1)')
        a('s_memtime s[16:17]')
        a('s_waitcnt vmcnt(0)')
        a('s_memtime s[18:19]')
        a('s_waitcnt lgkmcnt(0)')
        a('s_sub_u32 %s, s16, s80' % sT0)
        a('s_add_u32 s20, s20, %s' % sT0)
        a('s_sub_u32 %s, s18, s80' % sT0)
        a('s_add_u32 s21, s21, %s' % sT0)
    a('s_add_u32 %s, %s, 16384' % (sPubR, sPubR))
    a('s_branch %s' % top)
    a(noown + ':')
    if not opt.get('chain_only'):
        nochk, ag = a.label('nochk'), a.label('kvag')
        a('s_cmp_eq_u32 %s, 0' % sChk)
        a('s_cbranch_scc1 %s' % nochk)
        a('v_mov_b32 %s, 0x%x' % (T(0), L_KT + 3584))
        a('s_waitcnt vmcnt(7)')
        a('ds_read_b32 %s, %s' % (T(0), T(0)))
        a('s_mov_b32 %s, 0' % sSpin)
        a('s_waitcnt lgkmcnt(0)')
        a(ag + ':')
        a('v_cmp_ne_u32 vcc, 0x20202020, %s' % T(0))
        a('s_cbranch_vccz %s' % nochk)
        a('buffer_load_dword %s, off, %s, %s sc1' % (T(0), DBG, sChk))
        spin_check(a)
        a('s_waitcnt vmcnt(0)')
        a('s_branch %s' % ag)
        a(nochk + ':')
    prep()
    a('s_barrier')
    stamp(8)
    backoff(a, 100)
    a('s_branch %s' % top)
    a('; hot-end')
    for f in rare:
        f()
    tail_paths()


def dump_stamps(a):
    a('s_lshl_b32 %s, %s, 5' % (sT0, sGRP))
    a('s_add_u32 %s, %s, %s' % (sT0, sT0, sIDX))
    a('s_lshl_b32 %s, %s, 2' % (sT0, sT0))
    a('s_add_u32 %s, %s, %s' % (sT0, sT0, sW))
    a('s_lshl_b32 %s, %s, 6' % (sT0, sT0))
    a('s_add_u32 %s, %s, %s' % (sT0, sT0, sS))
    a('s_lshl_b32 %s, %s, 6' % (sT0, sT0))
    a('s_add_u32 %s, %s, 0x%x' % (sT0, sT0, STAMP + 4096))
    a('s_waitcnt lgkmcnt(0)')
    for i in range(9):
        a('v_writelane_b32 %s, s%d, %d' % (T(62), 64 + 2 * i, i))
    a('v_writelane_b32 %s, %s, 12' % (T(62), sRetry))
    a('v_lshrrev_b32 %s, 2, v1' % T(63))
    a('s_mov_b64 exec, 0x1fff')
    a('buffer_store_dword %s, %s, %s, %s offen' % (T(62), T(63), WS, sT0))
    a('s_mov_b64 exec, -1')
```

```python
import sys
from asmlib import Asm, Ins
from layout import *
import chain
from chain import sW, sGRP, sIDX, sSAFE, sT0, sT1, sT2, sT3, sSpin, WS, DBG, srd

NAME = 'concat_heads__linear_kernel_hedgehog__memory_aug_recurrent_mem_tr__prompt'
HEAD = open('cdna_kernels/%s.s.ref' % NAME).read().split('; Override launch')[0]


def calibrate(a):
    skip = a.label('nocal')
    a('s_cmp_lg_u32 %s, 2' % sGRP)
    a('s_cbranch_scc1 %s' % skip)
    a('s_or_b32 %s, %s, %s' % (sT0, sIDX, sW))
    a('s_cmp_lg_u32 %s, 0' % sT0)
    a('s_cbranch_scc1 %s' % skip)
    a('s_mov_b64 exec, 1')
    a('v_mov_b32 v1, 0')
    a('s_mov_b32 s32, 0x%x' % (MEMR + 6144))
    a('s_mov_b32 s33, 0x%x' % (MEMR + 8192 + 6144))
    a('s_mov_b32 s38, -1')
    a('s_mov_b32 s39, -1')
    a('buffer_store_dword v1, off, %s, s32 sc1' % WS)
    a('buffer_store_dword v1, off, %s, s33 sc1' % WS)
    a('s_waitcnt vmcnt(0)')
    a('s_memtime s[36:37]')
    for i in range(1, 5):
        for c in range(2):
            a('buffer_store_dword v1, off, %s, s%d offset:%d sc1' % (WS, 32 + c, 128 * i))
            a('s_waitcnt vmcnt(0) lgkmcnt(0)')
            a('s_mov_b32 s35, s36')
            a('s_memtime s[36:37]')
            a('s_waitcnt lgkmcnt(0)')
            a('s_sub_u32 s35, s36, s35')
            a('s_min_u32 s%d, s%d, s35' % (38 + c, 38 + c))
    a('s_sub_u32 s34, s38, s39')
    a('s_lshl_b32 s35, s38, 16')
    a('s_or_b32 s35, s35, s39')
    a('v_mov_b32 v1, s35')
    a('buffer_store_dword v1, off, %s, 0 offset:%d sc1' % (DBG, D_CAL * 4 + 4))
    a('s_cmp_gt_i32 s34, 0')
    a('s_cselect_b32 s34, 3, 2')
    a('v_mov_b32 v1, s34')
    a('buffer_store_dword v1, off, %s, 0 offset:%d sc1' % (DBG, D_CAL * 4))
    a('s_mov_b64 exec, -1')
    a(skip + ':')


def build(opt):
    a = Asm()
    k = NAME + '_kernel'
    a('.amdgcn_target "amdgcn-amd-amdhsa--gfx950"')
    a('.text')
    a('.globl %s' % k)
    a('.p2align 8')
    a('.type %s,@function' % k)
    a(k + ':')
    a('s_cmp_ge_u32 s2, 256')
    a('s_cbranch_scc1 L_end0')
    a('s_load_dwordx16 s[64:79], s[0:1], 0')
    a('s_load_dwordx8 s[80:87], s[0:1], 64')
    a('s_load_dwordx4 s[88:91], s[0:1], 96')
    a('s_getreg_b32 %s, hwreg(HW_REG_XCC_ID, 0, 4)' % sGRP)
    a('v_lshrrev_b32 v1, 6, v0')
    a('v_mov_b32 v9, v0')
    a('v_and_b32 v0, 63, v0')
    a('v_readfirstlane_b32 %s, v1' % sW)
    a('s_lshr_b32 %s, s2, 3' % sIDX)
    a('s_mov_b32 %s, 0' % sSAFE)
    if opt.get('force_safe'):
        a('s_mov_b32 %s, 8' % sGRP)
    a('s_waitcnt lgkmcnt(0)')
    srd(a, 4, 90, WS_BYTES)
    srd(a, 8, 88, 256)
    if not opt.get('nocodepf'):
        cp = a.label('cp')
        a('s_getpc_b64 s[12:13]')
        a(cp + ':')
        a('s_lshl_b32 %s, %s, 12' % (sT0, sIDX))
        a('v_lshl_add_u32 v10, v9, 7, %s' % sT0)
        a('v_cmp_gt_u32 vcc, 32, v9')
        a('v_cmp_gt_u32 s[14:15], %s, v10' % 'sCODE')
        a('s_and_b64 vcc, vcc, s[14:15]')
        a('v_mov_b32 v13, s13')
        a('v_add_co_u32 v12, s[14:15], s12, v10')
        a('v_addc_co_u32 v13, s[14:15], 0, v13, s[14:15]')
        a('s_and_saveexec_b64 s[14:15], vcc')
        a('s_cbranch_execz %s' % (cp + 'x'))
        a('global_load_dword v255, v[12:13], off')
        a(cp + 'x:')
        a('s_mov_b64 exec, s[14:15]')
        a.lines.insert(len(a.lines) - 11, Ins('s_mov_b32 s16, L_end - %s' % cp))
        for x in a.lines[-12:]:
            if isinstance(x, Ins):
                x.text = x.text.replace('sCODE', 's16')
    a('s_mov_b32 %s, 0' % chain.sCens)
    a('v_mov_b64 v[4:5], -1')
    a('v_mov_b64 v[6:7], -1')
    a('v_mov_b32 v8, 0')
    a('v_lshlrev_b32 v2, 4, v9')
    a('v_lshlrev_b32 v3, 2, v9')
    a('s_lshl_b32 %s, s2, 13' % sT0)
    a('s_add_u32 %s, %s, 0x%x' % (sT1, sT0, MEMR))
    a('s_add_u32 %s, %s, 0x%x' % (sT2, sT0, MEML))
    a('s_bfe_u32 %s, s2, 0x20005' % sT0)
    a('s_lshl_b32 %s, %s, 18' % (sT0, sT0))
    a('s_and_b32 %s, s2, 31' % sT3)
    a('s_mul_i32 %s, %s, 5120' % (sT3, sT3))
    a('s_add_u32 %s, %s, %s' % (sT0, sT0, sT3))
    a('s_add_u32 %s, %s, 0x%x' % (sT0, sT0, PART))
    a('s_cmp_lt_u32 s2, 128')
    a('s_cselect_b32 %s, %s, %s' % (sT2, sT2, sT0))
    for s_ in (sT1, sT2):
        a('buffer_store_dwordx4 v[4:7], v2, %s, %s offen sc1' % (WS, s_))
        a('s_add_u32 %s, %s, 4096' % (s_, s_))
        a('buffer_store_dword v4, v3, %s, %s offen sc1' % (WS, s_))
    a('s_lshl_b32 %s, s2, 7' % sT0)
    a('s_add_u32 %s, %s, 0x%x' % (sT0, sT0, FLG))
    a('v_and_b32 v3, 124, v3')
    a('buffer_store_dword v8, v3, %s, %s offen sc1' % (WS, sT0))
    a('s_cmp_lt_u32 %s, 8' % sGRP)
    a('s_cbranch_scc1 L_dispatch')
    a('L_fallback:')
    a('s_waitcnt vmcnt(0) lgkmcnt(0)')
    a('s_barrier')
    chain.census(a)
    a('s_mov_b32 %s, 1' % sSAFE)
    a('s_lshr_b32 %s, s2, 5' % sGRP)
    a('s_and_b32 %s, s2, 31' % sIDX)
    a('L_dispatch:')
    a('s_cmp_lt_u32 %s, 2' % sGRP)
    a('s_cbranch_scc1 L_chain')
    calibrate(a)
    if opt.get('chain_only'):
        a('s_waitcnt vmcnt(0)')
        a('s_barrier')
        chain.census(a)
        a('v_lshlrev_b32 v1, 2, v0')
        a('buffer_load_dword v1, v1, %s, 0 offen sc1' % DBG)
        a('s_waitcnt vmcnt(0)')
        chain.verdict(a, 'v1')
        a('s_branch L_end')
    else:
        import workers
        workers.gen_workers(a, opt)
    a('L_end0:')
    a('s_endpgm')
    chain.gen_chain(a, opt)
    a('L_end:')
    a('s_endpgm')
    body = a.finish()
    txt = HEAD + '; @launch grid=(256,1,1) block=(256,1,1) lds=163840\n' + body
    txt += '''.section .rodata,"a"
.p2align 6
.amdhsa_kernel %s
  .amdhsa_next_free_vgpr 512
  .amdhsa_next_free_sgpr 102
  .amdhsa_accum_offset 256
  .amdhsa_group_segment_fixed_size 0
  .amdhsa_kernarg_size 112
  .amdhsa_user_sgpr_count 2
  .amdhsa_user_sgpr_kernarg_segment_ptr 1
  .amdhsa_system_sgpr_workgroup_id_x 1
  .amdhsa_float_denorm_mode_32 3
.end_amdhsa_kernel
''' % k
    import align
    txt = align.phase(txt)
    if opt.get('align'):
        import align
        txt, nn, np_ = align.fix(txt)
        a.pads = (a.pads, nn, np_)
    return txt, a.pads


if __name__ == '__main__':
    out = sys.argv[1]
    opt = {}
    for o in sys.argv[2:]:
        k_, _, v_ = o.partition('=')
        opt[k_] = int(v_) if v_ else True
    txt, pads = build(opt)
    open(out, 'w').write(txt)
    print('wrote', out, len(txt), 'bytes', txt.count('\n'), 'lines', pads, 'pads')
```

```python
from layout import *

L_IMG = 0
L_QT = L_IMG
L_KT = 10240
RP = 288
L_OI = 14336
L_KX = 16384
L_W = 32768
UB = 0

SPIN = 1 << 17


def T(i, n=1):
    return 'v%d' % (16 + i) if n == 1 else 'v[%d:%d]' % (16 + i, 16 + i + n - 1)


REG_TILES = [('Q', c) for c in range(9)] + [('K', c) for c in range(10)] + [('V', c) for c in range(5, 10)] + \
            [('O', 0), ('O', 1), ('O', 2)]
LDS_TILES = [('V', c) for c in range(5)] + [('Q', 9), ('O', 3), ('O', 4)]
TILES = REG_TILES + LDS_TILES


def tile_reg(tile):
    i = REG_TILES.index(tile)
    return ('a', 16 * i) if i < 16 else ('v', 80 + 16 * (i - 16))


def slot(tile, half):
    f, b = tile_reg(tile)
    b += 8 * half
    return '%s[%d:%d]' % (f, b, b + 7)


def lds_off(tile, half):
    pos = TILES.index(tile) % 8
    return pos * 16384 + half * 2048


class VQ:
    def __init__(self, a):
        self.a, self.q = a, []

    def add(self, tag, n=1):
        self.q += [tag] * n
        assert len(self.q) <= 63, len(self.q)

    def wait(self, tag):
        last = max(i for i, t in enumerate(self.q) if t == tag)
        n = len(self.q) - 1 - last
        self.a('s_waitcnt vmcnt(%d)' % n)
        self.q = self.q[last + 1:]


sW, sGRP, sIDX, sSAFE = 's28', 's29', 's30', 's31'
sS, sMemL, sMemRin, sPubL, sPubR = 's32', 's33', 's34', 's35', 's36'
sP = ['s37', 's38', 's39', 's40', 's41']
sOwn0, sOwn1, sVx, sKxN, sVm0, sKM, sFlag, sOwner, sC, sSpin = ['s%d' % i for i in range(42, 52)]
sT0, sT1, sT2, sT3 = 's52', 's53', 's54', 's55'
sWarm, sW16, sN8 = 's56', 's57', 's[58:59]'
sChk = 's97'
sOnes = 's[22:23]'
sLine = 's96'
sM0N = 's60'
sSig = 's61'
sFl3, sFlag3, sOOB, sLim = 's62', 's20', 's21', 's19'
sEarly = 's18'
sRetry = 's63'
WS, DBG = 's[4:7]', 's[8:11]'


def srd(a, d, p, nbytes):
    a('s_mov_b32 s%d, s%d' % (d, p))
    a('s_and_b32 s%d, s%d, 0xffff' % (d + 1, p + 1))
    a('s_mov_b32 s%d, 0x%x' % (d + 2, nbytes))
    a('s_mov_b32 s%d, 0x20000' % (d + 3))


sCens = 's27'


def census(a):
    skip = a.label('cens')
    a('s_or_b32 %s, %s, %s' % (sT0, sW, sCens))
    a('s_mov_b32 %s, 1' % sCens)
    a('s_cmp_lg_u32 %s, 0' % sT0)
    a('s_cbranch_scc1 %s' % skip)
    a('s_lshl_b32 %s, 1, %s' % (sT0, sIDX))
    a('s_lshl_b32 %s, %s, 3' % (sT1, sGRP))
    a('s_cmp_lt_u32 %s, 8' % sGRP)
    a('s_cselect_b32 %s, %s, 0' % (sT0, sT0))
    a('s_cselect_b32 %s, %s, 0' % (sT1, sT1))
    a('s_mov_b64 exec, 1')
    a('v_mov_b32 v14, 1')
    a('v_mov_b32 v15, %s' % sT0)
    a('buffer_atomic_add_x2 v[14:15], off, %s, %s sc1' % (DBG, sT1))
    a('s_mov_b64 exec, -1')
    a(skip + ':')


def verdict(a, vreg):
    ok, again = a.label('vok'), a.label('vagain')
    a('s_mov_b32 %s, 0' % sSpin)
    a(again + ':')
    a('v_cmp_eq_u32 vcc, -1, %s' % vreg)
    a('s_and_b32 %s, vcc_lo, 0xaaaa' % sT0)
    a('s_cmp_eq_u32 %s, 0xaaaa' % sT0)
    a('s_cbranch_scc1 %s' % ok)
    a('s_mov_b32 %s, 0' % sT0)
    for i in range(8):
        a('v_readlane_b32 %s, %s, %d' % (sT1, vreg, 2 * i))
        a('s_add_u32 %s, %s, %s' % (sT0, sT0, sT1))
    a('s_cmp_lt_u32 %s, 256' % sT0)
    a('s_cbranch_scc1 %s' % (again + 'w'))
    a('s_cmp_lg_u32 %s, 0' % sSAFE)
    a('s_cbranch_scc1 %s' % ok)
    a('s_branch L_fallback')
    a(again + 'w:')
    a('s_add_u32 %s, %s, 1' % (sSpin, sSpin))
    a('s_cmp_gt_u32 %s, %d' % (sSpin, SPIN))
    a('s_cbranch_scc1 L_end')
    a('s_sleep 6')
    a('v_lshlrev_b32 %s, 2, v0' % vreg)
    a('buffer_load_dword %s, %s, %s, 0 offen sc1' % (vreg, vreg, DBG))
    a('s_waitcnt vmcnt(0)')
    a('s_branch %s' % again)
    a(ok + ':')


def rho(a, dst, tmp):
    a('v_bfe_u32 %s, v0, 2, 2' % tmp)
    a('v_and_b32 %s, 1, v0' % dst)
    a('v_lshl_add_u32 %s, %s, 1, %s' % (dst, tmp, dst))


def spin_check(a):
    a('s_add_u32 %s, %s, 1' % (sSpin, sSpin))
    a('s_cmp_gt_u32 %s, %d' % (sSpin, SPIN))
    a('s_cbranch_scc1 L_end')


def gen_chain(a, opt):
    stamps = opt.get('stamps')
    a('L_chain:')
    if stamps:
        a('s_memrealtime s[24:25]')
    srd(a, 12, 76, 5242880)
    srd(a, 16, 78, 5242880)
    srd(a, 20, 80, 5242880)
    srd(a, 92, 82, 5242880)
    SRD = {'Q': 's[12:15]', 'K': 's[16:19]', 'V': 's[20:23]', 'O': 's[92:95]'}
    vWq, vWo, vT, vTo = T(40), T(42), T(44), T(46)
    t0, t1, t2 = T(50), T(51), T(52)
    T41, T43, T45, T47 = T(41), T(43), T(45), T(47)
    a('v_lshrrev_b32 %s, 5, v0' % t0)
    a('v_bfe_u32 %s, v0, 4, 1' % t1)
    a('v_lshl_add_u32 %s, %s, 3, %s' % (t0, t0, t1))
    a('v_lshlrev_b32 %s, 13, %s' % (t0, t0))
    a('s_lshl_b32 %s, %s, 8' % (sT0, sIDX))
    a('s_lshl_b32 %s, %s, 17' % (sT1, sW))
    a('s_add_u32 %s, %s, %s' % (sT0, sT0, sT1))
    a('v_lshrrev_b32 %s, 4, v0' % t1)
    a('v_and_b32 %s, 15, v0' % t2)
    for p, dst in enumerate((vWq, T41)):
        a('v_add_u32 %s, %d, %s' % (dst, 4 * p, t1))
        a('v_lshlrev_b32 %s, 1, %s' % (dst, dst))
        a('v_xor_b32 %s, %s, %s' % (dst, dst, t2))
        a('v_lshl_add_u32 %s, %s, 4, %s' % (dst, dst, t0))
        a('v_add_u32 %s, %s, %s' % (dst, sT0, dst))
    a('s_mul_i32 %s, %s, %d' % (sT0, sIDX, 128 * 1280))
    a('s_mul_i32 %s, %s, 640' % (sT1, sGRP))
    a('s_add_u32 %s, %s, %s' % (sT0, sT0, sT1))
    a('s_mul_i32 %s, %s, %d' % (sT1, sW, 32 * 1280))
    a('s_add_u32 %s, %s, %s' % (sT0, sT0, sT1))
    a('v_bfe_u32 %s, v0, 4, 1' % t0)
    a('v_lshlrev_b32 %s, 3, %s' % (t1, t0))
    a('v_lshrrev_b32 %s, 5, v0' % t2)
    a('v_lshl_add_u32 %s, %s, 1, %s' % (t1, t2, t1))
    a('v_bfe_u32 %s, v0, 3, 1' % t2)
    a('v_add_u32 %s, %s, %s' % (t1, t1, t2))
    a('v_mul_u32_u24 %s, 1280, %s' % (t1, t1))
    a('v_and_b32 %s, 7, v0' % t2)
    for p, dst in enumerate((vWo, T43)):
        a('v_add_u32 %s, %d, %s' % (dst, 2 * p, t0))
        a('v_lshlrev_b32 %s, 1, %s' % (dst, dst))
        a('v_xor_b32 %s, %s, %s' % (dst, dst, t2))
        a('v_lshl_add_u32 %s, %s, 4, %s' % (dst, dst, t1))
        a('v_add_u32 %s, %s, %s' % (dst, sT0, dst))
    a('s_mul_i32 %s, %s, %d' % (sSig, sGRP, 5 * 524288))
    a('s_lshl_b32 %s, %s, 12' % (sM0N, sW))
    a('s_add_u32 %s, %s, 0x%x' % (sM0N, sM0N, L_W))

    q = VQ(a)

    def issue(i):
        tile = TILES[i]
        k = tile[0]
        a('s_add_u32 m0, %s, %d' % (sM0N, (i % 8) * 16384))
        for j in range(4):
            if k in 'QKV':
                c = tile[1]
                lit = c * 524288 + j * (2 * 8192 - 1024)
                if c < 5:
                    a('s_add_u32 %s, %s, 0x%x' % (sT0, sSig, lit))
                else:
                    a('s_sub_u32 %s, 0x%x, %s' % (sT0, lit, sSig))
                v = (vWq, T41)[j >> 1]
            else:
                a('s_mov_b32 %s, 0x%x' % (sT0, (16 * (j >> 1) + 4 * (j & 1)) * 1280 + tile[1] * 128 - 1024 * j))
                v = (vWo, T43)[j & 1]
            a('buffer_load_dwordx4 %s, %s, %s offen offset:%d lds' % (v, SRD[k], sT0, 1024 * j))
        q.add(i, 4)

    if opt.get('estamps'):
        a('s_memrealtime s[24:25]')
    for i in range(7):
        issue(i)
    a('v_lshrrev_b32 %s, 4, v0' % t0)
    a('v_bfe_u32 %s, v0, 2, 2' % t1)
    a('v_lshl_add_u32 %s, %s, 3, %s' % (t2, t0, t1))
    a('v_and_b32 %s, 1, %s' % (t0, t0))
    a('v_lshl_add_u32 %s, %s, 2, %s' % (T(53), t0, t1))
    a('v_lshlrev_b32 %s, 1, %s' % (T(53), T(53)))
    a('v_bfe_u32 %s, v0, 1, 1' % T(54))
    a('v_and_b32 %s, 1, v0' % T(55))
    a('v_lshlrev_b32 %s, 3, %s' % (T(55), T(55)))
    a('s_lshl_b32 %s, %s, 2' % (sT0, sW))
    for t, dst in enumerate((vT, T45)):
        a('v_add3_u32 %s, %s, %d, %s' % (dst, T(54), 2 * t, sT0))
        a('v_xor_b32 %s, %s, %s' % (dst, dst, T(53)))
        a('v_lshl_add_u32 %s, %s, 4, %s' % (dst, dst, T(55)))
        a('v_lshl_add_u32 %s, %s, 8, %s' % (dst, t2, dst))
    a('v_lshrrev_b32 %s, 1, %s' % (t1, t1))
    a('v_lshl_add_u32 %s, %s, 1, %s' % (t1, t0, t1))
    a('v_xor_b32 %s, %s, %s' % (t1, sW, t1))
    a('v_lshl_add_u32 %s, %s, 1, %s' % (t1, t1, T(54)))
    a('v_lshl_add_u32 %s, %s, 4, %s' % (t1, t1, T(55)))
    a('v_lshl_add_u32 %s, %s, 7, %s' % (vTo, t2, t1))
    vTv, vTv1 = T(60), T(61)
    a('s_lshl_b32 %s, %s, 1' % (sT0, sW))
    for t, dst in enumerate((vTv, vTv1)):
        a('v_add3_u32 %s, %s, %d, %s' % (dst, T(54), 8 * t, sT0))
        a('v_xor_b32 %s, %s, %s' % (dst, dst, T(53)))
        a('v_lshl_add_u32 %s, %s, 4, %s' % (dst, dst, T(55)))
        a('v_lshl_add_u32 %s, %s, 8, %s' % (dst, t2, dst))
    FAR = {vT: T(56), T45: T(57), vTo: T(58), vTv: T(62), vTv1: T(63)}
    for near, far in FAR.items():
        a('v_add_u32 %s, 0x%x, %s' % (near, L_W, near))
        a('v_add_u32 %s, 0x10000, %s' % (far, near))
    a('v_lshlrev_b32 v1, 4, v0')
    a('v_add_u32 v2, %s, v1' % sM0N)
    a('v_add_u32 v3, 0x10000, v2')

    g, n = T(0), T(1)
    a('v_lshrrev_b32 %s, 4, v0' % g)
    a('v_and_b32 %s, 15, v0' % n)
    a('v_mov_b32 v4, 0x4444')
    a('v_mov_b32 %s, 0xeeee' % t0)
    a('v_and_b32 %s, 2, v0' % t1)
    a('v_cmp_ne_u32 vcc, 0, %s' % t1)
    a('v_cndmask_b32 v4, v4, %s, vcc' % t0)
    rh, gl, gh = T(2), T(3), T(4)
    rho(a, rh, t0)
    a('v_and_b32 %s, 1, %s' % (gl, g))
    a('v_lshrrev_b32 %s, 1, %s' % (gh, g))
    a('v_mul_u32_u24 v5, %d, %s' % (2 * RP, g))
    a('v_bfe_u32 %s, v0, 2, 1' % t0)
    a('v_lshl_add_u32 v5, %s, 4, v5' % t0)
    a('v_bfe_u32 %s, v0, 3, 1' % t0)
    a('v_lshl_add_u32 v5, %s, 3, v5' % t0)
    a('v_and_b32 %s, 3, v0' % t0)
    a('v_lshl_add_u32 v5, %s, 1, v5' % t0)
    a('s_lshl_b32 %s, %s, 6' % (sT0, sW))
    a('v_add_u32 v5, %s, v5' % sT0)
    a('v_mul_u32_u24 v6, %d, %s' % (RP, rh))
    a('v_lshl_add_u32 v6, %s, 4, v6' % g)
    a('s_lshl_b32 %s, %s, 8' % (sT0, sW))
    a('s_add_u32 %s, %s, 0x%x' % (sT0, sT0, L_OI))
    a('v_and_b32 %s, 13, v0' % t1)
    a('v_lshl_add_u32 %s, %s, 1, %s' % (t1, gh, t1))
    a('v_and_b32 %s, 2, v0' % t2)
    a('v_lshl_add_u32 %s, %s, 5, %s' % (t1, t2, t1))
    a('v_lshlrev_b32 %s, 4, %s' % (t1, t1))
    a('v_lshl_add_u32 v7, %s, 3, %s' % (gl, t1))
    a('v_add_u32 v7, %s, v7' % sT0)
    a('s_lshl_b32 %s, %s, 8' % (sT0, sIDX))
    a('s_lshl_b32 %s, %s, 13' % (sT1, sW))
    a('s_add_u32 %s, %s, %s' % (sT0, sT0, sT1))
    a('v_lshl_add_u32 v8, v0, 2, %s' % sT0)
    a('s_lshl_b32 %s, %s, 10' % (sT0, sW))
    a('v_add_u32 v11, %s, v1' % sT0)
    a('s_lshl_b32 %s, %s, 8' % (sT0, sW))
    a('s_add_u32 %s, %s, 4096' % (sT0, sT0))
    a('v_lshl_add_u32 v9, v0, 2, %s' % sT0)
    a('v_and_b32 %s, 8, v0' % t1)
    a('v_and_b32 %s, 1, v0' % t2)
    a('v_lshl_add_u32 %s, %s, 2, %s' % (t1, t2, t1))
    a('v_bfe_u32 %s, v0, 1, 2' % t2)
    a('v_add_u32 %s, %s, %s' % (t1, t1, t2))
    a('v_lshl_add_u32 %s, %s, 4, %s' % (t1, g, t1))
    a('v_lshlrev_b32 v10, 4, %s' % t1)
    a('s_mov_b32 %s, 0' % sS)
    a('s_lshl_b32 %s, %s, 19' % (sT1, sGRP))
    a('s_add_u32 %s, %s, 0x%x' % (sPubL, sT1, MEML + 8192))
    a('s_add_u32 %s, %s, 0x%x' % (sMemL, sT1, MEML))
    for t in range(5):
        a('s_add_u32 %s, %s, 0x%x' % (sP[t], sT1, PART + t * 32768))
    a('s_add_u32 %s, %s, 0x%x' % (sOwn0, sT1, PART))
    a('s_add_u32 %s, %s, 0x%x' % (sOwn1, sT1, PART + 4096))
    a('s_lshl_b32 %s, %s, 20' % (sT1, sGRP))
    a('s_add_u32 %s, %s, 0x%x' % (sPubR, sT1, MEMR + 16384))
    a('s_xor_b32 %s, %s, 0x100000' % (sT1, sT1))
    a('s_add_u32 %s, %s, 0x%x' % (sMemRin, sT1, MEMR))
    a('s_lshl_b32 %s, %s, 14' % (sKxN, sIDX))
    a('s_lshl_b32 %s, %s, 11' % (sT2, sW))
    a('s_add_u32 %s, %s, 8192' % (sT2, sT2))
    a('s_add_u32 %s, %s, %s' % (sVx, sKxN, sT2))
    a('s_add_u32 %s, %s, 0x%x' % (sVm0, sT2, L_KX))
    a('s_lshl_b32 %s, %s, 12' % (sT2, sW))
    a('s_add_u32 %s, %s, %s' % (sT2, sT2, sKxN))
    a('s_add_u32 %s, %s, 0x80000' % (sWarm, sT2))
    a('s_lshl_b32 %s, %s, 12' % (sKM, sIDX))
    a('s_lshl_b32 %s, %s, 11' % (sT1, sGRP))
    a('s_add_u32 %s, %s, %s' % (sKM, sKM, sT1))
    a('s_lshl_b32 %s, %s, 9' % (sT1, sW))
    a('s_add_u32 %s, %s, %s' % (sKM, sKM, sT1))
    a('s_add_u32 %s, %s, 0x%x' % (sKM, sKM, KMVM - 0x20000))
    a('s_and_b32 %s, %s, 7' % (sT1, sIDX))
    a('s_add_u32 %s, %s, 32' % (sT1, sT1))
    a('s_bitcmp1_b32 %s, 0' % sW)
    a('s_cselect_b32 %s, %s, %s' % (sT1, sT1, sIDX))
    a('s_lshl_b32 %s, %s, 7' % (sLine, sT1))
    a('s_lshl_b32 %s, %s, 5' % (sT1, sGRP))
    a('s_add_u32 %s, %s, %s' % (sT1, sT1, sIDX))
    a('s_lshl_b32 %s, %s, 7' % (sT1, sT1))
    a('s_add_u32 %s, %s, 0x%x' % (sFlag, sT1, FLG))
    import struct
    import math
    cbits = struct.unpack('<I', struct.pack('<f', 128 ** -0.5 * math.log2(math.e)))[0]
    a('s_mov_b32 %s, 0x%x' % (sC, cbits))
    a('s_mov_b32 s58, 0xcccccccc')
    a('s_mov_b32 s59, 0xcccccccc')
    a('s_mov_b32 %s, 0' % sRetry)
    a('s_lshl_b32 %s, %s, 4' % (sW16, sW))
    a('s_sub_u32 %s, 3, %s' % (sT1, sW))
    a('s_lshl_b32 %s, %s, 5' % (sT1, sT1))
    a('s_add_u32 %s, %s, %s' % (sT1, sT1, sIDX))
    a('s_cmp_lt_u32 %s, 40' % sT1)
    a('s_cselect_b32 %s, 1, 0' % sOwner)
    a('s_cselect_b32 %s, %s, 0' % (sT1, sT1))
    a('s_and_b32 %s, %s, 1' % (sT2, sT1))
    a('s_lshl_b32 %s, %s, 7' % (sT2, sT2))
    a('s_lshr_b32 %s, %s, 1' % (sT1, sT1))
    a('s_lshl_b32 %s, %s, 13' % (sT3, sT1))
    a('s_add_u32 %s, %s, %s' % (sT3, sT3, sT2))
    a('v_bfe_u32 %s, v0, 3, 1' % t1)
    a('v_lshl_add_u32 %s, %s, 2, %s' % (t1, t1, g))
    a('v_lshlrev_b32 %s, 8, %s' % (t1, t1))
    a('v_and_b32 %s, 7, v0' % t2)
    a('v_lshl_add_u32 v12, %s, 4, %s' % (t2, t1))
    a('v_add_u32 v12, %s, v12' % sT3)
    a('s_lshl_b32 %s, %s, 8' % (sT3, sT1))
    a('s_add_u32 %s, %s, %s' % (sT3, sT3, sT2))
    a('v_lshlrev_b32 %s, 3, %s' % (t2, t2))
    a('v_lshl_add_u32 v13, %s, 6, %s' % (gl, t2))
    a('v_add_u32 v13, %s, v13' % sT3)
    a('s_sub_u32 %s, %s, 8192' % (sKxN, sVx))

    def trread(i, f, b):
        tile = TILES[i]
        pos = (i % 8) * 16384
        for half in range(2):
            for j, row in enumerate((0, 4, 32, 36)):
                if tile[0] == 'O':
                    v, o = vTo, pos + (row + 64 * half) * 128
                else:
                    v, o = ((vTv, vTv1) if tile[0] == 'V' else (vT, T45))[half], pos + row * 256
                if o >= 65536:
                    v, o = FAR[v], o - 65536
                r = b + 8 * half + 2 * j
                a('ds_read_b64_tr_b16 %s[%d:%d], %s offset:%d' % (f, r, r + 1, v, o))

    NR = len(REG_TILES)
    for i in range(NR):
        q.wait(i)
        a('s_barrier')
        if i == 0 and opt.get('estamps'):
            a('s_memrealtime s[32:33]')
            a('s_waitcnt lgkmcnt(0)')
            for k, r in enumerate((100, 98, 24, 32)):
                a('v_mov_b32 %s, s%d' % (T(8 + k), r))
            a('s_lshl_b32 %s, s2, 4' % sT0)
            a('s_add_u32 %s, %s, 0x%x' % (sT0, sT0, STAMP + 0x1e0000))
            a('buffer_store_dwordx4 %s, off, %s, %s' % (T(8, 4), WS, sT0))
            a('s_mov_b32 s32, 0')
            a('s_lshl_b32 %s, %s, 19' % (sT1, sGRP))
            a('s_add_u32 %s, %s, 0x%x' % (sMemL, sT1, MEML))
        if i == 0:
            census(a)
        issue(i + 7)
        f, b = tile_reg(TILES[i])
        trread(i, f, b)
        a('s_waitcnt lgkmcnt(0)')
    srd(a, 12, 74, 10240)
    a('v_bfe_u32 %s, v0, 3, 1' % t0)
    a('v_and_b32 %s, 2, v0' % t1)
    a('v_lshl_add_u32 %s, %s, 2, %s' % (t0, t0, t1))
    a('v_bfe_u32 %s, v0, 2, 1' % t1)
    a('v_add_u32 %s, %s, %s' % (t0, t0, t1))
    a('v_mul_u32_u24 %s, 1280, %s' % (t0, t0))
    a('v_lshrrev_b32 %s, 4, v0' % t1)
    a('v_lshl_add_u32 %s, %s, 5, %s' % (t0, t1, t0))
    a('v_and_b32 %s, 1, v0' % t1)
    a('v_lshl_add_u32 %s, %s, 4, %s' % (t0, t1, t0))
    for j in range(3):
        skip = a.label('m0s')
        a('s_add_u32 %s, %s, %d' % (sT0, sW, 4 * j))
        if j == 2:
            a('s_and_b32 %s, %s, 9' % (sT0, sT0))
        a('s_lshl_b32 %s, %s, 10' % (sT1, sT0))
        a('s_add_u32 m0, %s, 0x%x' % (sT1, L_IMG))
        a('s_mul_i32 %s, %s, 5' % (sT1, sGRP))
        a('s_add_u32 %s, %s, %s' % (sT0, sT0, sT1))
        a('s_sub_u32 %s, %s, 10' % (sT1, sT0))
        a('s_cmp_ge_u32 %s, 10' % sT0)
        a('s_cselect_b32 %s, %s, %s' % (sT0, sT1, sT0))
        a('s_lshl_b32 %s, %s, 7' % (sT0, sT0))
        a('buffer_load_dwordx4 %s, s[12:15], %s offen lds' % (t0, sT0))
        q.add('mem0')
    for i in range(NR, len(TILES)):
        q.wait(i)
        a('s_barrier')
        if i == NR:
            issue(len(TILES) - 1)
        if i == len(TILES) - 1:
            again = a.label('start')
            a('s_mov_b32 %s, 0' % sSpin)
            if stamps:
                a('s_memrealtime s[98:99]')
            a('s_branch %s' % (again + 'g'))
            a(again + ':')
            a('s_sleep %d' % opt.get('ssl', 6))
            a('v_lshlrev_b32 %s, 2, v0' % t0)
            a('buffer_load_dword %s, %s, %s, 0 offen sc1' % (t0, t0, DBG))
            spin_check(a)
            a('s_waitcnt vmcnt(0)')
            a(again + 'g:')
            a('s_mov_b32 %s, %s' % (sT3, sSpin))
            verdict(a, t0)
            a('s_mov_b32 %s, %s' % (sSpin, sT3))
            a('v_readlane_b32 %s, %s, %d' % (sT1, t0, D_CAL))
            a('s_cmp_eq_u32 %s, 0' % sT1)
            a('s_cbranch_scc1 %s' % again)
            if not opt.get('chain_only'):
                a('v_readlane_b32 %s, %s, %d' % (sT2, t0, D_KV))
                a('s_cmp_lg_u32 %s, 0x20202020' % sT2)
                a('s_cbranch_scc1 %s' % again)
            a('s_and_b32 %s, %s, 1' % (sT1, sT1))
            if 'forcecal' in opt:
                a('s_mov_b32 %s, %d' % (sT1, opt['forcecal'] & 1))
            if opt.get('flipcal'):
                a('s_xor_b32 %s, %s, 1' % (sT1, sT1))
            a('s_lshl_b32 %s, %s, 13' % (sT1, sT1))
            a('s_add_u32 %s, %s, %s' % (sPubR, sPubR, sT1))
            a('s_add_u32 %s, %s, %s' % (sMemRin, sMemRin, sT1))
            k_dma(a)
        trread(i, 'v', 16)
        a('s_waitcnt lgkmcnt(0)')
        a('s_barrier')
        for j in range(4):
            o = (i % 8) * 16384 + j * 1024
            a('ds_write_b128 %s, %s offset:%d' % ('v2' if o < 65536 else 'v3', T(4 * j, 4), o & 65535))
        if i == len(TILES) - 3:
            a('v_lshlrev_b32 %s, 2, v0' % t0)
            a('buffer_load_dword %s, %s, %s, 0 offen sc1' % (t0, t0, DBG))
            q.add(len(TILES) - 1)
    a('s_mov_b32 %s, 0x%x' % (sLim, struct.unpack('<I', struct.pack('<f', opt.get('lim', 30) / (128 ** -0.5 * math.log2(math.e))))[0]))
    a('s_mov_b32 %s, 0xf0000000' % sOOB)
    a('s_cmp_eq_u32 %s, 3' % sW)
    a('s_cselect_b32 %s, %s, %s' % (sFlag3, sFlag, sOOB))
    a('s_mov_b32 %s, %s' % (sFl3, sFlag3))
    a('s_mov_b32 s22, 0x3f803f80')
    a('s_mov_b32 s23, 0x3f803f80')
    if opt.get('acc'):
        for k in range(64, 86):
            a('s_mov_b32 s%d, 0' % k)
    if stamps:
        a('s_memtime s[92:93]')
        a('s_memrealtime s[100:101]')
    if opt.get('fine'):
        edge(a, 0)
        a('s_lshl_b32 %s, %s, 5' % (sT0, sGRP))
        a('s_add_u32 %s, %s, %s' % (sT0, sT0, sIDX))
        a('s_lshl_b32 %s, %s, 2' % (sT0, sT0))
        a('s_add_u32 %s, %s, %s' % (sT0, sT0, sW))
        a('s_lshl_b32 %s, %s, 12' % (sT0, sT0))
        a('s_add_u32 s26, %s, 0x%x' % (sT0, STAMP + 4096 + 64))
    fast, slow_ = a.label('loopfast'), a.label('loopsafe')
    a('s_waitcnt vmcnt(0)')
    a('s_cmp_lg_u32 %s, 0' % sSAFE)
    a('s_cbranch_scc1 %s' % slow_)
    fin = a.label('chainfin')
    step_loop(a, False, fast, fin, opt)
    step_loop(a, True, slow_, fin, opt)
    a(fin + ':')
    if opt.get('fine'):
        edge(a, 1)
    a('s_waitcnt lgkmcnt(0)')
    a('s_barrier')
    stage(a)
    a('s_add_u32 %s, %s, 0x20000' % (sKM, sKM))
    a('v_lshrrev_b32 %s, 1, v1' % T(62))
    a('s_waitcnt lgkmcnt(0)')
    a('buffer_store_dwordx2 v[14:15], %s, %s, %s offen sc1' % (T(62), WS, sKM))
    if opt.get('cnt'):
        a('s_lshl_b32 %s, %s, 5' % (sT0, sGRP))
        a('s_add_u32 %s, %s, %s' % (sT0, sT0, sIDX))
        a('s_lshl_b32 %s, %s, 2' % (sT0, sT0))
        a('s_add_u32 %s, %s, %s' % (sT0, sT0, sW))
        a('s_lshl_b32 %s, %s, 2' % (sT0, sT0))
        a('s_add_u32 %s, %s, 0x%x' % (sT0, sT0, STAMP + 2048))
        a('v_mov_b32 v16, %s' % sRetry)
        a('buffer_store_dword v16, off, %s, %s' % (WS, sT0))
        if opt.get('acc'):
            for k in range(4):
                a('v_mov_b32 v%d, s%d' % (20 + k, (20 + k * 1) if (opt.get('ackd') and k < 2) else 82 + k))
            a('s_lshl_b32 %s, %s, 2' % (sT0, sT0))
            a('s_sub_u32 %s, %s, 0x%x' % (sT0, sT0, 4 * (STAMP + 2048) - STAMP - 0x180000))
            a('buffer_store_dwordx4 v[20:23], off, %s, %s' % (WS, sT0))
    a('s_waitcnt vmcnt(0)')
    a('s_barrier')
    a('s_cmp_lg_u32 %s, 0' % sW)
    a('s_cbranch_scc1 L_end')
    a('v_mov_b32 v14, 64')
    a('buffer_store_dword v14, off, %s, %s sc1' % (WS, sFlag))
    if stamps:
        a('s_memtime s[94:95]')
        a('s_memrealtime s[86:87]')
        a('s_waitcnt lgkmcnt(0)')
        a('s_sub_u32 s94, s94, s92')
        a('s_sub_u32 s86, s86, s100')
        a('v_mov_b32 v16, s94')
        a('v_mov_b32 v17, s86')
        a('v_mov_b32 v18, s100')
        a('v_mov_b32 v19, s98')
        a('s_lshl_b32 %s, %s, 5' % (sT0, sGRP))
        a('s_add_u32 %s, %s, %s' % (sT0, sT0, sIDX))
        a('s_lshl_b32 %s, %s, 4' % (sT0, sT0))
        a('s_add_u32 %s, %s, 0x%x' % (sT0, sT0, STAMP))
        a('v_mov_b32 v20, s24')
        a('buffer_store_dwordx4 v[16:19], off, %s, %s' % (WS, sT0))
        a('buffer_store_dword v20, off, %s, %s offset:1024' % (WS, sT0))
    a('s_branch L_end')


PHASE = {'p4': 4}
AREG = [40, 44, 48, 40, 44, 48, 52, 56, 40, 44]


def edge(a, k):
    lp = a.label('edge')
    a('s_memrealtime s[64:65]')
    a('s_waitcnt lgkmcnt(0)')
    a(lp + ':')
    a('s_memrealtime s[66:67]')
    a('s_memtime s[68:69]')
    a('s_waitcnt lgkmcnt(0)')
    a('s_cmp_eq_u32 s64, s66')
    a('s_cbranch_scc1 %s' % lp)
    a('s_lshl_b32 %s, %s, 5' % (sT0, sGRP))
    a('s_add_u32 %s, %s, %s' % (sT0, sT0, sIDX))
    a('s_lshl_b32 %s, %s, 2' % (sT0, sT0))
    a('s_add_u32 %s, %s, %s' % (sT0, sT0, sW))
    a('s_lshl_b32 %s, %s, 4' % (sT0, sT0))
    a('s_add_u32 %s, %s, 0x%x' % (sT0, sT0, STAMP + 0x1c0000 + 8 * k))
    a('v_mov_b32 %s, s66' % T(62))
    a('v_mov_b32 %s, s68' % T(63))
    a('buffer_store_dwordx2 %s, off, %s, %s' % (T(62, 2), WS, sT0))


def k_dma(a):
    a('s_sub_u32 m0, %s, 8192' % sVm0)
    a('s_nop 0')
    for j in range(2):
        a('buffer_load_dwordx4 v1, %s, %s offen offset:%d sc1 lds' % (WS, sKxN, 1024 * j))
    a('s_add_u32 %s, %s, 0x80000' % (sKxN, sKxN))


def stage(a, rare=None, delay=0):
    skip = a.label('stage')
    a('s_cmp_lg_u32 %s, 0' % sGRP)
    a('s_cbranch_scc1 %s' % skip)
    a('s_lshl_b32 %s, %s, 6' % (sT0, sW))
    a('v_bfe_u32 v14, v0, 1, 3')
    a('v_mul_u32_u24 v14, %d, v14' % RP)
    a('v_lshrrev_b32 v15, 4, v0')
    a('v_lshl_add_u32 v14, v15, 4, v14')
    a('v_and_b32 v15, 1, v0')
    a('v_lshl_add_u32 v14, v15, 3, v14')
    a('v_add_u32 v14, %s, v14' % sT0)
    a('ds_read_b64 v[14:15], v14 offset:%d' % L_KT)
    a(skip + ':')
    if rare is not None:
        fl = a.label('flush')
        a('s_cmp_ge_u32 %s, 62' % sS)
        a('s_cbranch_scc1 %s' % fl)
        a(fl + 'b:')

        def flush():
            a(fl + ':')
            a('v_lshrrev_b32 %s, 1, v1' % T(63))
            backoff(a, delay)
            a('s_waitcnt lgkmcnt(0)')
            a('buffer_store_dwordx2 v[14:15], %s, %s, %s offen sc1' % (T(63), WS, sKM))
            a('s_branch %s' % (fl + 'b'))
        rare.append(flush)


def backoff(a, cycles):
    n = cycles // 4
    while n > 0:
        a('s_nop %d' % (min(n, 16) - 1))
        n -= 16


def g_loads(a, r, soff):
    a('buffer_load_dwordx4 %s, v11, %s, %s offen sc1' % (T(r[0], 4), WS, soff))
    a('buffer_load_dword %s, v9, %s, %s offen sc1' % (T(r[1]), WS, soff))


def g_writes(r, o=0):
    return ['ds_write_b128 v11, %s offset:%d' % (T(r[0], 4), o), 'ds_write_b32 v9, %s offset:%d' % (T(r[1]), o)]


def g_check(r):
    return ['v_max3_u32 %s, %s, %s, %s' % (T(63), T(r[0]), T(r[0] + 1), T(r[0] + 2)),
            'v_max3_u32 %s, %s, %s, %s' % (T(63), T(63), T(r[0] + 3), T(r[1])),
            'v_cmp_eq_u32 vcc, -1, %s' % T(63)]


def pack_ops(r, twice=False):
    ops = ['v_add_f32 %s, %s, %s' % (T(r + 2), T(r), T(r + 2)),
           'v_add_f32 %s, %s, %s' % (T(r + 3), T(r + 1), T(r + 3)),
           'v_cvt_pk_bf16_f32 %s, %s, %s' % (T(r), T(r + 2), T(r + 3))]
    if twice:
        ops.append('v_cvt_pk_bf16_f32 %s, %s, %s' % (T(r + 1), T(r + 2), T(r + 3)))
    return ops


def step_loop(a, safe, head, fin, opt):
    loc = ' sc1' if safe else ''
    st = opt.get('phase_stamps')
    sm = lambda acc, A, B: 'v_smfmac_f32_16x16x64_bf16 %s, %s, %s, v4' % (T(acc, 4), T(A, 4), B)
    mf = lambda D, A, B, C: 'v_mfma_f32_16x16x32_bf16 %s, %s, %s, %s' % (T(D, 4), T(A, 4), T(B, 4), C)
    B0, B1 = T(24, 8), T(32, 8)
    lq = []
    rare = []
    vA = 'v10'

    def stamp(i):
        if opt.get('fine') and i not in (2, 4, 5, 11):
            a('s_memtime s[%d:%d]' % ((86, 87) if i == 1 else (64 + 2 * i, 65 + 2 * i)))
            if i == 3:
                a('s_mov_b32 s66, s86')
        if opt.get('acc') and i in (1, 3, 11, 6, 7):
            if i == 1:
                for k, (x, y) in enumerate(((3, 1), (5, 3), (6, 5), (7, 6))):
                    a('s_sub_u32 %s, s%d, s%d' % (sT0, 64 + 2 * x, 64 + 2 * y))
                    a('s_add_u32 s%d, s%d, %s' % (82 + k, 82 + k, sT0))
            j = 5 if i == 11 else i
            a('s_memtime s[%d:%d]' % (64 + 2 * j, 65 + 2 * j))
        if st and i != 11:
            a('%s s[%d:%d]' % ('s_memrealtime' if opt.get('rt') else 's_memtime', 64 + 2 * i, 65 + 2 * i))

    def count(inc):
        if st or opt.get('cnt') or opt.get('fine'):
            a('s_add_u32 %s, %s, 0x%x' % (sRetry, sRetry, inc))

    def ds(text, tag):
        a(text)
        lq.append(tag)

    def lwait(tag):
        if tag not in lq:
            return
        last = max(i for i, t in enumerate(lq) if t == tag)
        a('s_waitcnt lgkmcnt(%d)' % min(len(lq) - 1 - last, 15))
        del lq[:last + 1]

    def ldslot(dst, tile, half, tag='x'):
        o = lds_off(tile, half)
        ds('ds_read_b128 %s, %s offset:%d' % (T(dst, 4), 'v3' if o >> 16 else 'v2', o & 65535), tag)
        ds('ds_read_b128 %s, %s offset:%d' % (T(dst + 4, 4), 'v3' if o >> 16 else 'v2', (o & 65535) + 1024), tag)

    def img(dst, c):
        ds('ds_read_b128 %s, %s offset:%d' % (T(dst, 4), vA, L_IMG - UB + c * 1024), 'A%d' % c)

    def opread(dst, base, ks, tag):
        ds('ds_read_b128 %s, v6 offset:%d' % (T(dst, 4), base + ks * 64), tag)

    def zero(lo, hi):
        for r in range(lo, hi, 2):
            a('v_mov_b64 %s, 0' % T(r, 2))

    def phase(name, back=8):
        if name in opt or name in PHASE:
            a('; phase %d %d' % (opt.get(name, PHASE.get(name)), back))

    def barrier(name=None):
        if name:
            phase(name)
        a('s_waitcnt lgkmcnt(0)')
        a('s_barrier')
        del lq[:]

    SA, SB, SR = (56, 61), (52, 62), (52, 60)

    def prep():
        zero(0, 24)
        a('s_and_b32 %s, %s, 15' % (sT0, sS))
        a('s_or_b32 %s, %s, %s' % (sT0, sT0, sW16))
        a('s_add_u32 %s, %s, %d' % (sChk, sS, 4 + 16 * D_KV))
        a('s_lshr_b32 %s, %s, 2' % (sChk, sChk))
        a('s_cmp_eq_u32 %s, 12' % sT0)
        a('s_cselect_b32 %s, %s, 0' % (sChk, sChk))
        a('s_cmp_lt_u32 %s, 48' % sS)
        a('s_cselect_b32 %s, %s, 0' % (sChk, sChk))
    b1 = a.label('b1')
    a(head + ':')
    prep()
    ldslot(24, ('V', 0), 0)
    ldslot(32, ('V', 0), 1)
    a('s_barrier')
    a('ds_read_b128 %s, v11 offset:5120' % T(SR[0], 4))
    a('ds_read_b32 %s, v9 offset:5120' % T(SR[1]))
    a('s_branch %s' % b1)
    a('.p2align 8')
    a('; hot-begin')
    for _ in range(opt.get('pad', 0)):
        a('s_nop 0')
    top = head + '_top'
    a(top + ':')
    stamp(0)
    if opt.get('fine'):
        a('s_memrealtime s[68:69]')
    if opt.get('adapt'):
        a('s_barrier')
    backoff(a, opt.get('gdelay', 200))
    if opt.get('fine'):
        stamp(9)
    again, got = a.label('gag'), a.label('got')
    g_loads(a, SA, sMemL)
    backoff(a, opt.get('gspace', 60))
    g_loads(a, SB, sMemL)
    a('s_waitcnt vmcnt(11)')
    ldslot(24, ('V', 0), 0)
    ldslot(32, ('V', 0), 1)
    if opt.get('stpos'):
        stage(a, rare)
    a('s_mov_b32 %s, 0' % sSpin)
    a(again + ':')
    a('s_waitcnt vmcnt(2)')
    for x in g_writes(SA) + g_check(SA):
        a(x)
    a('s_cbranch_vccnz %s' % (again + 'b'))
    a(got + ':')

    def second(again=again, got=got):
        a(again + 'b:')
        g_loads(a, SA, sMemL)
        count(1)
        a('s_waitcnt vmcnt(2)')
        for x in g_writes(SB) + g_check(SB):
            a(x)
        a('s_cbranch_vccz %s' % got)
        g_loads(a, SB, sMemL)
        count(1)
        spin_check(a)
        a('s_branch %s' % again)
    rare.append(second)
    backoff(a, opt.get('rdelay', 0))
    g_loads(a, SR, sMemRin)
    a(b1 + ':')
    barrier('p1')
    stamp(1)
    img(40, 0)
    img(44, 1)
    img(48, 2)
    RI = opt.get('rissue', -1)
    a('s_mov_b32 m0, %s' % sVm0)
    a('s_nop 0')
    for j in range(2):
        a('buffer_load_dwordx4 v1, %s, %s offen offset:%d sc1 lds' % (WS, sVx, 1024 * j))
    nl = a.label('nlast')
    a('s_cmp_ge_u32 %s, 62' % sS)
    a('s_cbranch_scc1 %s' % nl)
    a(nl + 'b:')

    def early_flag():
        a(nl + ':')
        a('v_mov_b32 %s, %s' % (T(63), sS))
        a('buffer_store_dword %s, off, %s, %s sc1' % (T(63), WS, sFlag3))
        a('s_mov_b32 %s, %s' % (sFl3, sOOB))
        a('s_branch %s' % (nl + 'b'))
    rare.append(early_flag)
    if opt.get('fine'):
        for i in range(11):
            a('v_writelane_b32 %s, s%d, %d' % (T(62), 64 + 2 * i, i))
        a('v_writelane_b32 %s, %s, 12' % (T(62), sRetry))
        a('v_lshrrev_b32 %s, 2, v1' % T(63))
        a('s_mov_b64 exec, 0x1fff')
        a('buffer_store_dword %s, %s, %s, s26 offen' % (T(62), T(63), WS))
        a('s_mov_b64 exec, -1')
        a('s_add_u32 s26, s26, 64')
    slow_ops = ['buffer_store_dwordx2 v[14:15], %s, %s, %s offen sc1' % (T(61), WS, sKM),
                'v_lshlrev_b32 %s, 3, v1' % T(63), 's_mov_b32 m0, 0x%x' % (L_KT + 3072), 's_mov_b32 exec_hi, 0',
                'buffer_load_dword %s, %s, %s offen sc1 lds' % (T(63), WS, sWarm), 's_mov_b32 exec_hi, -1']
    Areg = AREG
    RP_ = opt.get('rpos', 22)
    lops = []
    for c in range(5):
        nxt = ('V', c + 1) if c < 4 else ('Q', 9)
        lops += [(c, 16, B0, nxt, 0), (c, 0, slot(('Q', c), 0), None, 0), (c, 4, slot(('Q', c), 1), None, 0),
                (c, 20, B1, nxt, 1), (c, 8, slot(('K', c), 0), None, 0), (c, 12, slot(('K', c), 1), None, 0)]
    wr, ck = g_writes(SR, 5120), g_check(SR)
    norem, rok, ragain, late, watch = (a.label(x) for x in ('norem', 'rok', 'rag', 'late', 'watch'))

    def local_op(i, plain=False):
        c, acc, B, nxt, half = lops[i]
        if plain:
            a('s_waitcnt lgkmcnt(0)')
        else:
            lwait('A%d' % c)
            if nxt:
                lwait('B%d' % half)
        a(sm(acc, Areg[c], B))
        if nxt:
            ldslot(24 + 8 * half, nxt, half, 'B%d' % half)
        if i % 6 == 5 and c < 2:
            img(Areg[c + 3], c + 3)
    BP = opt.get('bpos', 29)
    assert RP_ <= BP - 2
    for i in range(30):
        local_op(i)
        if i == RP_:
            a('s_waitcnt vmcnt(%d)' % (3 if opt.get('fine') else 2))
            a(ck[0])
            a(ck[1])
        if i == RP_ + 1:
            a(ck[2])
        if i == RP_ + 2:
            a('s_cbranch_vccnz %s' % late)
            for x in wr:
                ds(x, 'w')
        if i == BP:
            a(rok + ':')
            a('v_lshrrev_b32 %s, 1, v1' % T(61))
            stamp(2)
            barrier('p2')
            stamp(3)
            for cc in range(5, 10 if BP == 29 else 9):
                img(Areg[cc], cc)
        elif i == 29:
            img(Areg[9], 9)

    def tail_paths():
        keep = list(lq)
        a(late + ':')
        for i in range(RP_ + 3, BP + 1):
            local_op(i, True)
        count(0x10000)
        a('s_mov_b32 %s, 0' % sSpin)
        a('s_add_u32 %s, %s, %s' % (sT0, sMemRin, sLine))
        a('s_branch %s' % ragain)
        a(watch + ':')
        a('buffer_load_dword %s, off, %s, %s sc1' % (T(63), WS, sT0))
        spin_check(a)
        a('s_waitcnt vmcnt(0)')
        a('v_cmp_eq_u32 vcc, -1, %s' % T(63))
        a('s_cbranch_vccnz %s' % watch)
        count(0x1000000)
        backoff(a, opt.get('rspace', 60))
        a(ragain + ':')
        g_loads(a, SR, sMemRin)
        spin_check(a)
        a('s_waitcnt vmcnt(0)')
        for x in ck:
            a(x)
        a('s_cbranch_vccnz %s' % watch)
        for x in wr:
            a(x)
        a('s_branch %s' % rok)
        lq[:] = keep
    kxo = lambda kt, ks: L_KX - UB + kt * 4096 + ks * 1024
    order = [(0, 0), (1, 0), (0, 1), (1, 1), (0, 2), (1, 2), (0, 3), (1, 3)]
    xreg = [60, 0, 4, Areg[5], Areg[6], Areg[7], Areg[8], Areg[9]]

    def xread(i):
        ds('ds_read_b128 %s, v1 offset:%d' % (T(xreg[i], 4), kxo(*order[i])), 'X%d' % i)
    seq = [('Q', 0, c) for c in range(5, 9)] + [('Q', 1, 5), ('Q', 1, 6), ('Q', 0, 9), ('Q', 1, 7), ('Q', 1, 8), ('Q', 1, 9)] + \
          [('K', t, c) for t in range(2) for c in range(5, 10)] + \
          [('V', t, c) for c in range(5, 10) for t in range(2)]
    acc = {'Q': 0, 'K': 8, 'V': 16}
    gap = {i: [] for i in range(30)}
    w16 = lambda r, off: [('wq' if r < 8 else 'wk', 'ds_write_b16 v5, %s offset:%d' % (T(r), off)),
                          ('wq' if r < 8 else 'wk', 'ds_write_b16_d16_hi v5, %s offset:%d' % (T(r), off + RP))]
    for j, (r, off) in enumerate(((0, L_QT), (4, L_QT + 32), (8, L_KT))):
        ops = pack_ops(r)
        g0 = (8, 12, 16)[j]
        for k in range(3):
            gap[g0 + k].append(ops[k])
        gap[g0 + 3] = w16(r, off) + gap[g0 + 3]
    gap[21] += pack_ops(12)
    gap[22] = w16(12, L_KT + 32) + gap[22]
    for x in [slow_ops[0], slow_ops[2], 's_sub_u32 %s, %s, 1' % (sT0, sS), 's_max_i32 %s, %s, 0' % (sT0, sT0), slow_ops[1]]:
        a(x)
    gap[0] += slow_ops[3:]
    for i, (m, t, c) in enumerate(seq):
        lwait('A%d' % c)
        if m == 'Q' and c == 9:
            lwait('B%d' % t)
        a(sm(acc[m] + 4 * t, Areg[c], (B0, B1)[t] if (m, c) == ('Q', 9) else slot((m, c), t)))
        if i in (5, 13, 17):
            xread((5, 13, 17).index(i))
        for x in gap[i]:
            if isinstance(x, tuple):
                ds(x[1], x[0])
            else:
                a(x)
        if i == 19:
            stamp(4)
        B4 = opt.get('b4', 24)
        if i == 23:
            xread(3)
            xread(4)
        if i == B4:
            phase('p4', 16 if opt.get('acc') else 8)
            a('s_waitcnt vmcnt(2) lgkmcnt(2)')
            a('s_barrier')
            stamp(11)
            lq[:] = ['X3', 'X4']
            opread(24, L_QT, 0, 'q0')
        if i == 25:
            opread(28, L_QT, 1, 'q1')
            xread(5)
        if i == 26:
            opread(32, L_QT, 2, 'q2')
        if i == 27:
            xread(6)
            opread(36, L_QT, 3, 'q3')
        if i == 26:
            a('v_mov_b32 v14, %s' % sT0)
        if i == 28:
            a('buffer_store_dword v14, off, %s, %s sc1' % (WS, sFl3))
        if i == 27:
            ns = a.label('ns')
            a('s_cmp_lg_u32 %s, 0' % sChk)
            a('s_cbranch_scc1 %s' % ns)
            a(ns + 'b:')

            def sample(ns=ns):
                a(ns + ':')
                a('s_movk_i32 m0, 0x%x' % (L_KT + 3584))
                a('s_nop 0')
                a('buffer_load_dword off, %s, %s sc1 lds' % (DBG, sChk))
                a('s_branch %s' % (ns + 'b'))
            rare.append(sample)
        if i == 29:
            xread(7)
    kmreg = [0, 4, Areg[5], Areg[6]]
    vp = ['v_add_f32 %s, %s, %s' % (T(18), T(16), T(18)), 'v_add_f32 %s, %s, %s' % (T(19), T(17), T(19)),
          'v_add_f32 %s, %s, %s' % (T(22), T(20), T(22)), 'v_add_f32 %s, %s, %s' % (T(23), T(21), T(23))]
    for i, (kt, ks) in enumerate(order):
        lwait('q%d' % ks)
        lwait('X%d' % i)
        D = 8 + 4 * kt
        a(mf(D, xreg[i], 24 + 4 * ks, '0' if ks == 0 else T(D, 4)))
        if 1 <= i <= 4:
            opread(kmreg[i - 1], L_KT, i - 1, 'M%d' % (i - 1))
            a(vp[i - 1])
        if i == 5:
            ds('ds_read_b128 %s, v11 offset:%d' % (T(Areg[7], 4), L_KX + 8192), 'vx')
        if i == 6:
            ds('ds_read_b128 %s, v11 offset:%d' % (T(Areg[8], 4), L_KX + 8192 + 4096), 'vx')
            a('v_cvt_pk_bf16_f32 v15, %s, %s' % (T(22), T(23)))
        if i == 7:
            a('v_cvt_pk_bf16_f32 v14, %s, %s' % (T(18), T(19)))
    VX0, VX1 = Areg[7], Areg[8]
    fill = ['v_mov_b64 %s, %s' % (T(20, 2), sOnes),
            'v_max3_f32 %s, |%s|, |%s|, |%s|' % (T(16), T(8), T(9), T(10)),
            'v_max3_f32 %s, %s, |%s|, |%s|' % (T(16), T(16), T(11), T(12)),
            'v_max3_f32 %s, %s, |%s|, |%s|' % (T(16), T(16), T(13), T(14)),
            'v_mov_b64 %s, %s' % (T(22, 2), sOnes), 'v_mov_b32 %s, 0' % T(6)]
    for ks in range(4):
        lwait('M%d' % ks)
        a(mf(60, kmreg[ks], 24 + 4 * ks, '0' if ks == 0 else T(60, 4)))
        if ks < 3:
            a(fill[2 * ks])
            a(fill[2 * ks + 1])
    ldslot(24, ('O', 3), 0, 'bo')
    ldslot(32, ('O', 3), 1, 'bo')
    a('s_cmp_eq_u32 %s, 63' % sS)
    a('s_cbranch_scc1 %s' % fin)
    stamp(5)
    big = a.label('big')
    a('v_max_f32 %s, %s, |%s|' % (T(16), T(16), T(15)))
    a('v_mov_b32 %s, 0' % T(5))
    a('v_max3_f32 %s, %s, |%s|, |%s|' % (T(16), T(16), T(60), T(61)))
    a('v_cmp_nge_f32 vcc, %s, %s' % (sLim, T(16)))
    for r in range(8):
        a('v_mul_f32 %s, %s, %s' % (T(8 + r), sC, T(8 + r)))
    a('v_mul_f32 %s, %s, %s' % (T(60), sC, T(60)))
    a('v_mul_f32 %s, %s, %s' % (T(61), sC, T(61)))
    a('s_cbranch_vccnz %s' % big)
    a(big + 'b:')

    def shift():
        a(big + ':')
        a('v_max3_f32 %s, %s, %s, %s' % (T(16), T(8), T(9), T(10)))
        for x, y in ((11, 12), (13, 14), (15, 60)):
            a('v_max3_f32 %s, %s, %s, %s' % (T(16), T(16), T(x), T(y)))
        a('v_max_f32 %s, %s, %s' % (T(16), T(16), T(61)))
        for op in ('v_permlane32_swap_b32', 'v_permlane16_swap_b32'):
            a('v_mov_b32 %s, %s' % (T(17), T(16)))
            a('%s %s, %s' % (op, T(16), T(17)))
            a('v_max_f32 %s, %s, %s' % (T(16), T(16), T(17)))
        for r in list(range(8, 16)) + [60, 61]:
            a('v_sub_f32 %s, %s, %s' % (T(r), T(r), T(16)))
        a('s_branch %s' % (big + 'b'))
    rare.append(shift)
    ex = lambda r: a('v_exp_f32 %s, %s' % (T(r), T(r)))
    cv = lambda d, x: a('v_cvt_pk_bf16_f32 %s, %s, %s' % (T(d), T(x), T(x + 1)))
    m16 = lambda D, A, B: a('v_mfma_f32_16x16x16_bf16 %s, %s, %s, 0' % (T(D, 4), A, T(B, 2)))
    LS, O0, O1 = 60, 48, 16
    ex(60)
    ex(61)
    ex(8)
    cv(4, 60)
    cv(7, 60)
    ex(9)
    ex(10)
    m16(LS, T(20, 2), 4)
    ex(11)
    m16(O0, 'v[14:15]', 4)
    ex(12)
    m16(O1, 'v[14:15]', 6)
    for r in (13, 14, 15):
        ex(r)
    for r in range(4):
        cv(r, 8 + 2 * r)
    zero(44, 48)
    a(mf(LS, 20, 0, T(LS, 4)))
    lwait('vx')
    zero(52, 54)
    a(mf(O0, VX0, 0, T(O0, 4)))
    zero(54, 58)
    a(mf(O1, VX1, 0, T(O1, 4)))
    zero(58, 60)
    zero(40, 44)
    a('v_rcp_f32 %s, %s' % (T(LS), T(LS)))
    a('s_mov_b64 exec, %s' % sN8)
    a('v_mov_b64 %s, %s' % (T(O0, 2), T(O1, 2)))
    a('v_mov_b64 %s, %s' % (T(O0 + 2, 2), T(O1 + 2, 2)))
    a('s_mov_b64 exec, -1')
    for r in (0, 2):
        a('v_pk_mul_f32 %s, %s, %s op_sel_hi:[1,0]' % (T(12 + r, 2), T(O0 + r, 2), T(LS, 2)))
    cv(12, 12)
    cv(13, 14)
    a('ds_write_b64 v7, %s' % T(12, 2))
    zero(O0, O0 + 4)
    a('s_add_u32 %s, %s, 1' % (sS, sS))
    for s_, d in ((sMemRin, 16384), (sKM, 0x20000), (sVx, 0x80000), (sWarm, 0x80000)):
        a('s_add_u32 %s, %s, 0x%x' % (s_, s_, d))
    a('s_xor_b32 %s, %s, 8192' % (sMemL, sMemL))
    barrier('p5')
    stamp(6)
    ds('ds_read_b128 %s, v1 offset:%d' % (T(16, 4), L_OI), 'o0')
    ds('ds_read_b128 %s, v1 offset:%d' % (T(20, 4), L_OI + 1024), 'o1')
    wo = [(slot(('O', t), 0), slot(('O', t), 1)) for t in range(3)] + [(B0, B1), (T(0, 8), T(8, 8))]
    store = lambda t: 'buffer_store_dword %s, v8, %s, %s offen%s' % (T(40 + 4 * t), WS, sP[t], loc)
    gaps = {i: [] for i in range(10)}
    for t in range(3):
        ops = pack_ops(40 + 4 * t)
        gaps[2 * t + 3] += ops[:2]
        gaps[2 * t + 4] += ops[2:]
        gaps[2 * t + 5].insert(0, store(t))
    a('s_sub_u32 m0, %s, 8192' % sVm0)
    for i in range(10):
        t, kc = i // 2, i & 1
        if i < 2:
            lwait('o%d' % i)
        if i >= 8:
            lwait('w%d' % kc)
        a(sm(40 + 4 * t, 16 + 4 * kc, wo[t][kc]))
        if i < 2:
            ldslot(8 * i, ('O', 4), i, 'w%d' % i)
        if i in (2, 3):
            a('buffer_load_dwordx4 v1, %s, %s offen offset:%d sc1 lds' % (WS, sKxN, 1024 * (i - 2)))
        for x in gaps[i]:
            a(x)
    a('s_add_u32 %s, %s, 0x80000' % (sKxN, sKxN))
    for x in pack_ops(52) + pack_ops(56):
        a(x)
    a(store(3))
    a(store(4))
    stamp(7)
    for t in range(5):
        a('s_xor_b32 %s, %s, 0x40000' % (sP[t], sP[t]))
    noown, again, okA, join = a.label('noown'), a.label('oag'), a.label('ook'), a.label('ojoin')
    a('s_cmp_eq_u32 %s, 0' % sOwner)
    a('s_cbranch_scc1 %s' % noown)
    SETS = (44, 24)
    SEL, ACC, CK = 40, 60, 23

    def loads(r):
        for t in range(4):
            a('buffer_load_dwordx4 %s, v12, %s, %s offen offset:%d sc1' % (
                T(r + 4 * t, 4), WS, sOwn0 if t < 2 else sOwn1, 2048 * (t & 1)))

    def reduce_(r, young):
        for t in range(4):
            a('s_waitcnt vmcnt(%d)' % (young + 3 - t))
            a(mf(ACC, SEL, r + 4 * t, '0' if t == 0 else T(ACC, 4)))
            x = r + 4 * t
            if t == 0:
                a('v_max3_u32 %s, %s, %s, %s' % (T(CK), T(x), T(x + 1), T(x + 2)))
                a('v_max_u32 %s, %s, %s' % (T(CK), T(CK), T(x + 3)))
            else:
                a('v_max3_u32 %s, %s, %s, %s' % (T(CK), T(CK), T(x), T(x + 1)))
                a('v_max3_u32 %s, %s, %s, %s' % (T(CK), T(CK), T(x + 2), T(x + 3)))
        a('v_cmp_eq_u32 vcc, -1, %s' % T(CK))
    a('v_and_b32 %s, 3, v0' % T(60))
    a('v_bfe_u32 %s, v0, 2, 1' % T(61))
    a('v_lshlrev_b32 %s, 4, %s' % (T(61), T(61)))
    a('v_mov_b32 %s, 0x3f80' % T(62))
    a('v_lshlrev_b32 %s, %s, %s' % (T(61), T(61), T(62)))
    for p in range(4):
        a('v_cmp_eq_u32 vcc, %d, %s' % (p, T(60)))
        a('v_cndmask_b32 %s, 0, %s, vcc' % (T(SEL + p), T(61)))
    a('s_mov_b32 %s, 0' % sSpin)
    a('s_mov_b32 %s, 0' % sEarly)
    backoff(a, opt.get('odelay', 20))
    loads(SETS[0])
    prep()
    backoff(a, max(0, opt.get('ospace', 80) - 80))
    loads(SETS[1])
    if not opt.get('stpos'):
        stage(a, rare)

    def finish_sum():
        a('v_mov_b32 %s, 0' % T(CK))
        for r in range(4):
            a('v_add_f32_dpp %s, %s, %s row_ror:8 row_mask:0xf bank_mask:0xf' % (T(ACC + r), T(ACC + r), T(ACC + r)))
        a('v_cvt_pk_bf16_f32 %s, %s, %s' % (T(ACC), T(ACC), T(ACC + 1)))
        a('v_cvt_pk_bf16_f32 %s, %s, %s' % (T(ACC + 1), T(ACC + 2), T(ACC + 3)))
    a(again + ':')
    reduce_(SETS[0], 4)
    finish_sum()
    a('s_cbranch_vccnz %s' % (again + 'b'))
    a(okA + ':')

    def more(again=again, okA=okA):
        a(again + 'b:')
        loads(SETS[0])
        a('s_mov_b32 %s, 1' % sEarly)
        count(0x100)
        reduce_(SETS[1], 4)
        finish_sum()
        a('s_cbranch_vccz %s' % okA)
        loads(SETS[1])
        count(0x100)
        spin_check(a)
        a('s_branch %s' % again)
    rare.append(more)
    stamp(10)
    a('s_mov_b64 exec, 0x00ff00ff')
    a('buffer_store_dwordx2 %s, v13, %s, %s offen%s' % (T(ACC, 2), WS, sPubL, loc))
    a('s_barrier')
    a('buffer_store_dwordx2 %s, v13, %s, %s offen sc1' % (T(ACC, 2), WS, sPubR))
    a('s_mov_b64 exec, -1')
    a('v_mov_b64 %s, -1' % T(40, 2))
    a('v_mov_b64 %s, -1' % T(42, 2))
    a('s_xor_b32 %s, %s, 8192' % (sPubL, sPubL))
    a('s_mov_b64 exec, 0x00ff00ff')
    a('buffer_store_dwordx2 %s, v13, %s, %s offen%s' % (T(40, 2), WS, sPubL, loc))
    a('s_mov_b64 exec, -1')
    stamp(8)
    for t in range(4):
        a('buffer_store_dwordx4 %s, v12, %s, %s offen offset:%d%s' % (
            T(40, 4), WS, sOwn0 if t < 2 else sOwn1, 2048 * (t & 1), loc))
    a('s_xor_b32 %s, %s, 0x40000' % (sOwn0, sOwn0))
    a('s_xor_b32 %s, %s, 0x40000' % (sOwn1, sOwn1))
    if opt.get('ackd'):
        a('s_waitcnt vmcnt(1)')
        a('s_memtime s[16:17]')
        a('s_waitcnt vmcnt(0)')
        a('s_memtime s[18:19]')
        a('s_waitcnt lgkmcnt(0)')
        a('s_sub_u32 %s, s16, s80' % sT0)
        a('s_add_u32 s20, s20, %s' % sT0)
        a('s_sub_u32 %s, s18, s80' % sT0)
        a('s_add_u32 s21, s21, %s' % sT0)
    a('s_add_u32 %s, %s, 16384' % (sPubR, sPubR))
    if opt.get('adapt'):
        a('s_cmp_eq_u32 %s, 0' % sEarly)
        a('s_cbranch_scc1 %s' % top)
        backoff(a, opt['adapt'])
    a('s_branch %s' % top)
    a(noown + ':')
    if not opt.get('stpos'):
        stage(a, rare, 200)
    if not opt.get('chain_only'):
        nochk, ag = a.label('nochk'), a.label('kvag')
        a('s_cmp_eq_u32 %s, 0' % sChk)
        a('s_cbranch_scc1 %s' % nochk)
        a('v_mov_b32 %s, 0x%x' % (T(0), L_KT + 3584))
        a('s_waitcnt vmcnt(7)')
        a('ds_read_b32 %s, %s' % (T(0), T(0)))
        a('s_mov_b32 %s, 0' % sSpin)
        a('s_waitcnt lgkmcnt(0)')
        a(ag + ':')
        a('v_cmp_ne_u32 vcc, 0x20202020, %s' % T(0))
        a('s_cbranch_vccz %s' % nochk)
        a('buffer_load_dword %s, off, %s, %s sc1' % (T(0), DBG, sChk))
        spin_check(a)
        a('s_waitcnt vmcnt(0)')
        a('s_branch %s' % ag)
        a(nochk + ':')
    prep()
    a('s_barrier')
    stamp(8)
    if not opt.get('adapt'):
        backoff(a, 100)
    a('s_branch %s' % top)
    a('; hot-end')
    for f in rare:
        f()
    tail_paths()


def dump_stamps(a):
    a('s_lshl_b32 %s, %s, 5' % (sT0, sGRP))
    a('s_add_u32 %s, %s, %s' % (sT0, sT0, sIDX))
    a('s_lshl_b32 %s, %s, 2' % (sT0, sT0))
    a('s_add_u32 %s, %s, %s' % (sT0, sT0, sW))
    a('s_lshl_b32 %s, %s, 6' % (sT0, sT0))
    a('s_add_u32 %s, %s, %s' % (sT0, sT0, sS))
    a('s_lshl_b32 %s, %s, 6' % (sT0, sT0))
    a('s_add_u32 %s, %s, 0x%x' % (sT0, sT0, STAMP + 4096))
    a('s_waitcnt lgkmcnt(0)')
    for i in range(9):
        a('v_writelane_b32 %s, s%d, %d' % (T(62), 64 + 2 * i, i))
    a('v_writelane_b32 %s, %s, 12' % (T(62), sRetry))
    a('v_lshrrev_b32 %s, 2, v1' % T(63))
    a('s_mov_b64 exec, 0x1fff')
    a('buffer_store_dword %s, %s, %s, %s offen' % (T(62), T(63), WS, sT0))
    a('s_mov_b64 exec, -1')
```

```python
import sys
from asmlib import Asm, Ins
from layout import *
import chain
from chain import sW, sGRP, sIDX, sSAFE, sT0, sT1, sT2, sT3, sSpin, WS, DBG, srd

NAME = 'concat_heads__linear_kernel_hedgehog__memory_aug_recurrent_mem_tr__prompt'
HEAD = open('cdna_kernels/%s.s.ref' % NAME).read().split('; Override launch')[0]


def calibrate(a):
    skip = a.label('nocal')
    a('s_cmp_lg_u32 %s, 2' % sGRP)
    a('s_cbranch_scc1 %s' % skip)
    a('s_or_b32 %s, %s, %s' % (sT0, sIDX, sW))
    a('s_cmp_lg_u32 %s, 0' % sT0)
    a('s_cbranch_scc1 %s' % skip)
    a('s_mov_b64 exec, 1')
    a('v_mov_b32 v1, 0')
    a('s_mov_b32 s32, 0x%x' % (MEMR + 6144))
    a('s_mov_b32 s33, 0x%x' % (MEMR + 8192 + 6144))
    a('s_mov_b32 s38, -1')
    a('s_mov_b32 s39, -1')
    a('buffer_store_dword v1, off, %s, s32 sc1' % WS)
    a('buffer_store_dword v1, off, %s, s33 sc1' % WS)
    a('s_waitcnt vmcnt(0)')
    a('s_memtime s[36:37]')
    for i in range(1, 5):
        for c in range(2):
            a('buffer_store_dword v1, off, %s, s%d offset:%d sc1' % (WS, 32 + c, 128 * i))
            a('s_waitcnt vmcnt(0) lgkmcnt(0)')
            a('s_mov_b32 s35, s36')
            a('s_memtime s[36:37]')
            a('s_waitcnt lgkmcnt(0)')
            a('s_sub_u32 s35, s36, s35')
            a('s_min_u32 s%d, s%d, s35' % (38 + c, 38 + c))
    a('s_sub_u32 s34, s38, s39')
    a('s_lshl_b32 s35, s38, 16')
    a('s_or_b32 s35, s35, s39')
    a('v_mov_b32 v1, s35')
    a('buffer_store_dword v1, off, %s, 0 offset:%d sc1' % (DBG, D_CAL * 4 + 4))
    a('s_cmp_gt_i32 s34, 0')
    a('s_cselect_b32 s34, 3, 2')
    a('v_mov_b32 v1, s34')
    a('buffer_store_dword v1, off, %s, 0 offset:%d sc1' % (DBG, D_CAL * 4))
    a('s_mov_b64 exec, -1')
    a(skip + ':')


def build(opt):
    a = Asm()
    k = NAME + '_kernel'
    a('.amdgcn_target "amdgcn-amd-amdhsa--gfx950"')
    a('.text')
    a('.globl %s' % k)
    a('.p2align 8')
    a('.type %s,@function' % k)
    a(k + ':')
    a('s_cmp_ge_u32 s2, 256')
    a('s_cbranch_scc1 L_end0')
    if opt.get('estamps'):
        a('s_memrealtime s[100:101]')
    a('s_load_dwordx16 s[64:79], s[0:1], 0')
    a('s_load_dwordx8 s[80:87], s[0:1], 64')
    a('s_load_dwordx4 s[88:91], s[0:1], 96')
    a('s_getreg_b32 %s, hwreg(HW_REG_XCC_ID, 0, 4)' % sGRP)
    a('v_lshrrev_b32 v1, 6, v0')
    a('v_mov_b32 v9, v0')
    a('v_and_b32 v0, 63, v0')
    a('v_readfirstlane_b32 %s, v1' % sW)
    a('s_lshr_b32 %s, s2, 3' % sIDX)
    a('s_mov_b32 %s, 0' % sSAFE)
    if opt.get('force_safe'):
        a('s_mov_b32 %s, 8' % sGRP)
    a('s_waitcnt lgkmcnt(0)')
    if opt.get('estamps'):
        a('s_memrealtime s[98:99]')
    srd(a, 4, 90, WS_BYTES)
    srd(a, 8, 88, 256)
    if not opt.get('nocodepf'):
        cp = a.label('cp')
        a('s_getpc_b64 s[12:13]')
        a(cp + ':')
        a('s_lshl_b32 %s, %s, 12' % (sT0, sIDX))
        a('v_lshl_add_u32 v10, v9, 7, %s' % sT0)
        a('v_cmp_gt_u32 vcc, 32, v9')
        a('v_cmp_gt_u32 s[14:15], %s, v10' % 'sCODE')
        a('s_and_b64 vcc, vcc, s[14:15]')
        a('v_mov_b32 v13, s13')
        a('v_add_co_u32 v12, s[14:15], s12, v10')
        a('v_addc_co_u32 v13, s[14:15], 0, v13, s[14:15]')
        a('s_and_saveexec_b64 s[14:15], vcc')
        a('s_cbranch_execz %s' % (cp + 'x'))
        a('global_load_dword v255, v[12:13], off')
        a(cp + 'x:')
        a('s_mov_b64 exec, s[14:15]')
        a.lines.insert(len(a.lines) - 11, Ins('s_mov_b32 s16, L_end - %s' % cp))
        for x in a.lines[-12:]:
            if isinstance(x, Ins):
                x.text = x.text.replace('sCODE', 's16')
    a('s_mov_b32 %s, 0' % chain.sCens)
    a('v_mov_b64 v[4:5], -1')
    a('v_mov_b64 v[6:7], -1')
    a('v_mov_b32 v8, 0')
    a('v_lshlrev_b32 v2, 4, v9')
    a('v_lshlrev_b32 v3, 2, v9')
    a('s_lshl_b32 %s, s2, 13' % sT0)
    a('s_add_u32 %s, %s, 0x%x' % (sT1, sT0, MEMR))
    a('s_add_u32 %s, %s, 0x%x' % (sT2, sT0, MEML))
    a('s_bfe_u32 %s, s2, 0x20005' % sT0)
    a('s_lshl_b32 %s, %s, 18' % (sT0, sT0))
    a('s_and_b32 %s, s2, 31' % sT3)
    a('s_mul_i32 %s, %s, 5120' % (sT3, sT3))
    a('s_add_u32 %s, %s, %s' % (sT0, sT0, sT3))
    a('s_add_u32 %s, %s, 0x%x' % (sT0, sT0, PART))
    a('s_cmp_lt_u32 s2, 128')
    a('s_cselect_b32 %s, %s, %s' % (sT2, sT2, sT0))
    if opt.get('x_nofill'):
        a('s_cmp_lt_u32 %s, %d' % (sGRP, opt['x_nofill']))
        a('s_cbranch_scc1 L_dispatch')
    for s_ in (sT1, sT2):
        a('buffer_store_dwordx4 v[4:7], v2, %s, %s offen sc1' % (WS, s_))
        a('s_add_u32 %s, %s, 4096' % (s_, s_))
        a('buffer_store_dword v4, v3, %s, %s offen sc1' % (WS, s_))
    a('s_lshl_b32 %s, s2, 7' % sT0)
    a('s_add_u32 %s, %s, 0x%x' % (sT0, sT0, FLG))
    a('v_and_b32 v3, 124, v3')
    a('buffer_store_dword v8, v3, %s, %s offen sc1' % (WS, sT0))
    a('s_cmp_lt_u32 %s, 8' % sGRP)
    a('s_cbranch_scc1 L_dispatch')
    a('L_fallback:')
    a('s_waitcnt vmcnt(0) lgkmcnt(0)')
    a('s_barrier')
    chain.census(a)
    a('s_mov_b32 %s, 1' % sSAFE)
    a('s_lshr_b32 %s, s2, 5' % sGRP)
    a('s_and_b32 %s, s2, 31' % sIDX)
    a('L_dispatch:')
    a('s_cmp_lt_u32 %s, 2' % sGRP)
    a('s_cbranch_scc1 L_chain')
    calibrate(a)
    if opt.get('chain_only'):
        a('s_waitcnt vmcnt(0)')
        a('s_barrier')
        chain.census(a)
        a('v_lshlrev_b32 v1, 2, v0')
        a('buffer_load_dword v1, v1, %s, 0 offen sc1' % DBG)
        a('s_waitcnt vmcnt(0)')
        chain.verdict(a, 'v1')
        a('s_branch L_end')
    else:
        import workers
        workers.gen_workers(a, opt)
    a('L_end0:')
    a('s_endpgm')
    chain.gen_chain(a, opt)
    a('L_end:')
    a('s_endpgm')
    body = a.finish()
    txt = HEAD + '; @launch grid=(256,1,1) block=(256,1,1) lds=163840\n' + body
    txt += '''.section .rodata,"a"
.p2align 6
.amdhsa_kernel %s
  .amdhsa_next_free_vgpr 512
  .amdhsa_next_free_sgpr 102
  .amdhsa_accum_offset 256
  .amdhsa_group_segment_fixed_size 0
  .amdhsa_kernarg_size 112
  .amdhsa_user_sgpr_count 2
  .amdhsa_user_sgpr_kernarg_segment_ptr 1
  .amdhsa_system_sgpr_workgroup_id_x 1
  .amdhsa_float_denorm_mode_32 3
.end_amdhsa_kernel
''' % k
    import align
    txt = align.phase(txt)
    if opt.get('align'):
        import align
        txt, nn, np_ = align.fix(txt)
        a.pads = (a.pads, nn, np_)
    return txt, a.pads


if __name__ == '__main__':
    out = sys.argv[1]
    opt = {}
    for o in sys.argv[2:]:
        k_, _, v_ = o.partition('=')
        opt[k_] = int(v_) if v_ else True
    txt, pads = build(opt)
    open(out, 'w').write(txt)
    print('wrote', out, len(txt), 'bytes', txt.count('\n'), 'lines', pads, 'pads')
```
